```python
import torch

def _softmax(x, axis=-1):
    return torch.softmax(x, dim=axis)
def _gelu(x):
    return torch.nn.functional.gelu(x, approximate="tanh")
def _silu(x):
    return torch.nn.functional.silu(x)
def _sigmoid(x):
    return torch.sigmoid(x)
def _layernorm(x, axis=-1, eps=1e-5):
    m = x.mean(dim=axis, keepdim=True)
    v = x.var(dim=axis, keepdim=True, unbiased=False)
    return (x - m) / torch.sqrt(v + eps)
def _scatter_add(tgt, idx, src, axis=0):
    return tgt.clone().index_add_(axis, idx, src)
def _segment_sum(src, seg, n):
    out = torch.zeros((n,) + src.shape[1:], dtype=src.dtype)
    return out.index_add_(0, seg, src)
def _pad(x, pw):
    flat = tuple(v for pair in reversed(pw) for v in pair)
    return torch.nn.functional.pad(x, flat)

kernel_name = 'concat_heads__mha_block_cached__mha_block_cached__near_ridge'

def setup_inputs():

    _w = (lambda a: (lambda t: t.to(torch.bfloat16) if t.is_floating_point() else t)(torch.as_tensor(a)))
    def _A_setup():
        B, Sq, D = 8, 192, 512
        H, Sk, Dh = 32, 512, 128
        return {
            "x": _w((lambda *s: torch.randn(*s, dtype=torch.bfloat16) * 0.8)(B, Sq, D)),
            "k_cache": _w((lambda *s: torch.randn(*s, dtype=torch.bfloat16) * 0.8)(B, H, Sk, Dh)),
            "v_cache": _w((lambda *s: torch.randn(*s, dtype=torch.bfloat16) * 0.05)(B, H, Sk, Dh)),
            "wq": _w((lambda *s: torch.randn(*s, dtype=torch.bfloat16) * 0.8)(D, H * Dh) * (D ** -0.5)),
            "wo": _w((lambda *s: torch.randn(*s, dtype=torch.bfloat16) * 0.05)(H * Dh, D) * ((H * Dh) ** -0.5)),
        }
    _A_in = _A_setup()

    def _B_setup():
        B, Sq, D = 8, 192, 512
        H, Sk, Dh = 32, 512, 128
        return {
            "x": _w((lambda *s: torch.randn(*s, dtype=torch.bfloat16) * 0.8)(B, Sq, D)),
            "k_cache": _w((lambda *s: torch.randn(*s, dtype=torch.bfloat16) * 0.8)(B, H, Sk, Dh)),
            "v_cache": _w((lambda *s: torch.randn(*s, dtype=torch.bfloat16) * 0.05)(B, H, Sk, Dh)),
            "wq": _w((lambda *s: torch.randn(*s, dtype=torch.bfloat16) * 0.8)(D, H * Dh) * (D ** -0.5)),
            "wo": _w((lambda *s: torch.randn(*s, dtype=torch.bfloat16) * 0.05)(H * Dh, D) * ((H * Dh) ** -0.5)),
        }
    _B_in = _B_setup()

    return {
        "A_x": _A_in["x"],
        "A_k_cache": _A_in["k_cache"],
        "A_v_cache": _A_in["v_cache"],
        "A_wq": _A_in["wq"],
        "A_wo": _A_in["wo"],
        "B_x": _B_in["x"],
        "B_k_cache": _B_in["k_cache"],
        "B_v_cache": _B_in["v_cache"],
        "B_wq": _B_in["wq"],
        "B_wo": _B_in["wo"],
    }

def reference(A_x, A_k_cache, A_v_cache, A_wq, A_wo, B_x, B_k_cache, B_v_cache, B_wq, B_wo):
    def _A_ref(x, k_cache, v_cache, wq, wo):
        B, Sq, D = x.shape
        H, Dh = 32, 128
        q = (lambda x, *d: x.permute(*d))((x @ wq).reshape(B, Sq, H, Dh), 0, 2, 1, 3)
        scores = torch.einsum("bhqd,bhkd->bhqk", q, k_cache) * (Dh ** -0.5)
        p = _softmax(scores, axis=-1)
        o = torch.einsum("bhqk,bhkd->bhqd", p, v_cache)
        return (lambda x, *d: x.permute(*d))(o, 0, 2, 1, 3).reshape(B, Sq, H * Dh) @ wo

    def _B_ref(x, k_cache, v_cache, wq, wo):
        B, Sq, D = x.shape
        H, Dh = 32, 128
        q = (lambda x, *d: x.permute(*d))((x @ wq).reshape(B, Sq, H, Dh), 0, 2, 1, 3)
        scores = torch.einsum("bhqd,bhkd->bhqk", q, k_cache) * (Dh ** -0.5)
        p = _softmax(scores, axis=-1)
        o = torch.einsum("bhqk,bhkd->bhqd", p, v_cache)
        return (lambda x, *d: x.permute(*d))(o, 0, 2, 1, 3).reshape(B, Sq, H * Dh) @ wo

    a = _A_ref(A_x, A_k_cache, A_v_cache, A_wq, A_wo)
    b = _B_ref(B_x, B_k_cache, B_v_cache, B_wq, B_wo)
    return torch.concatenate([a, b], axis=-1)
```

```python
from lib import *
import struct
def f2u(x): return struct.unpack('<I',struct.pack('<f',x))[0]
X0=0; W0=24576; W1=57344; X1=90112; KM1=114688
def slot(s): return ((s+4)%5)*32768
vKr=list(range(2,10)); vVr=list(range(10,14)); vKd=list(range(14,18)); vVd=18; vL=[19,20,21]; vM1=22; vM2=23; vO16=24
vT=[25,26,27,28,29,30]
vXr0=list(range(32,36)); vXr1=list(range(36,40)); vWr=list(range(40,44)); vXd=list(range(44,50)); vWd=list(range(50,58)); vWarm=[58,59,60]
PB=40
QB=64; NB=160; SB=208
def P(nt,i): return PB+8*nt+i
def Qf(nt,kk): b=QB+(nt*8+kk)*4; return f'v[{b}:{b+3}]'
def NEG(nt): return NB+16*nt
def S(nt): return SB+16*nt
def Oacc(nt,mt): return (nt*4+mt)*16
VF=192; KF=224
sX='s[8:11]'; sW='s[12:15]'; sK='s[16:19]'; sV='s[20:23]'; sO='s[24:27]'
sw,shh,sqh='s28','s29','s30'
sT=['s32','s33','s34']; sF=['s35','s36','s37']
s_xo,s_wo,s_xm,s_wm='s38','s39','s40','s41'
s_vso,s_kso,s_dm,s_delta,s_rs,s_cnt,s_tmp,s_c='s42','s43','s44','s45','s46','s47','s48','s49'
s_hq='s50'
THR=8.0
CSCALE=1.4426950408889634*0.08838834764831845

def dma(v,srd,so,off=0):
    return f'buffer_load_dwordx4 v{v}, {srd}, {so} offen'+(f' offset:{off}' if off else '')+' lds'
def stage_dma(k_only=False,v_only=False):
    g=[]
    if not k_only:
        g.append([f's_mov_b32 m0, {s_dm}','s_nop 0',dma(vVd,sV,s_vso,0)])
        for j in (1,2,3): g.append([dma(vVd,sV,s_vso,j*1024)])
    g.append([f's_add_u32 m0, {s_dm}, 8192','s_nop 0',dma(vKd[0],sK,s_kso,0)])
    for j in (1,2,3): g.append([dma(vKd[j],sK,s_kso,j*1024)])
    return g
def stage_adv():
    return [f's_add_u32 {s_vso}, {s_vso}, 8192', f's_add_u32 {s_kso}, {s_kso}, 8192',
            f's_add_u32 {s_dm}, {s_dm}, 32768', f's_cmp_ge_u32 {s_dm}, 163840',
            f's_cselect_b32 {s_tmp}, 163840, 0', f's_sub_u32 {s_dm}, {s_dm}, {s_tmp}',
            f's_cmp_ge_u32 {s_kso}, 131072', 's_cselect_b32 s18, 0, 131072',
            f's_cmp_ge_u32 {s_vso}, 131072', 's_cselect_b32 s22, 0, 131072']

def setup(e):
    e(f'''s_cmp_ge_u32 s2, 256
    s_cbranch_scc1 k1_end
    s_load_dwordx16 s[52:67], s[0:1], 0
    s_load_dwordx4 s[68:71], s[0:1], 64
    s_load_dwordx2 s[72:73], s[0:1], 96
    v_lshrrev_b32 v1, 6, v0
    v_and_b32 v0, 63, v0
    s_and_b32 s3, s2, 1
    v_readfirstlane_b32 {sw}, v1
    s_lshr_b32 s4, s2, 3
    s_and_b32 s5, s4, 7
    s_lshr_b32 s4, s4, 3
    s_bfe_u32 s6, s2, 0x20001
    s_lshl_b32 s6, s6, 2
    s_add_u32 s6, s6, s4
    s_lshr_b32 {shh}, {sw}, 1
    s_and_b32 {sqh}, {sw}, 1
    s_lshl_b32 s7, s6, 1
    s_add_u32 s7, s7, {shh}
    s_waitcnt lgkmcnt(0)
    s_cmp_eq_u32 s3, 0
    s_cselect_b32 s8, s52, s62
    s_cselect_b32 s9, s53, s63
    s_cselect_b32 s16, s54, s64
    s_cselect_b32 s17, s55, s65
    s_cselect_b32 s20, s56, s66
    s_cselect_b32 s21, s57, s67
    s_cselect_b32 s12, s58, s68
    s_cselect_b32 s13, s59, s69
    s_mul_i32 s31, s5, 196608
    s_add_u32 s8, s8, s31
    s_addc_u32 s9, s9, 0
    s_and_b32 s9, s9, 0xffff
    s_mov_b32 s10, 196608
    s_mov_b32 s11, 0x20000
    s_and_b32 s13, s13, 0xffff
    s_mov_b32 s14, 4194304
    s_mov_b32 s15, 0x20000
    s_lshl_b32 s31, s5, 5
    s_add_u32 s31, s31, s7
    s_lshl_b32 s51, s31, 17
    s_lshr_b32 s31, s31, 15
    s_add_u32 s16, s16, s51
    s_addc_u32 s17, s17, s31
    s_and_b32 s17, s17, 0xffff
    s_mov_b32 s18, 131072
    s_mov_b32 s19, 0x20000
    s_add_u32 s20, s20, s51
    s_addc_u32 s21, s21, s31
    s_and_b32 s21, s21, 0xffff
    s_mov_b32 s22, 131072
    s_mov_b32 s23, 0x20000
    s_mul_i32 s31, s3, 48
    s_mul_i32 s51, s5, 6
    s_add_u32 s31, s31, s51
    s_mul_i32 s51, {sqh}, 3
    s_add_u32 s31, s31, s51
    s_lshl_b32 s31, s31, 8
    s_lshl_b32 s51, s7, 3
    s_add_u32 s31, s31, s51
    s_lshl_b32 s31, s31, 10
    s_add_u32 s24, s72, s31
    s_addc_u32 s25, s73, 0
    s_and_b32 s25, s25, 0xffff
    s_mov_b32 s26, 786432
    s_mov_b32 s27, 0x20000''')
    t0,t1,t2,t3,t4,t5=vT
    e(f'''v_lshrrev_b32 v{t0}, 4, v0
    v_and_b32 v{t1}, 15, v0
    v_lshlrev_b32 v{vO16}, 4, v0''')
    e(f'''v_lshlrev_b32 v{t2}, 2, v{t0}
    v_xor_b32 v{t2}, v{t1}, v{t2}
    v_lshlrev_b32 v{t2}, 4, v{t2}
    v_lshl_add_u32 v{vVd}, v{t0}, 8, v{t2}
    v_lshl_add_u32 v{vWd[0]}, v{t0}, 13, v{t2}''')
    for t in range(1,8): e(f'v_add_u32 v{vWd[t]}, {t*32768}, v{vWd[0]}')
    e(f'''v_xor_b32 v{t2}, v{t1}, v{t0}
    v_lshlrev_b32 v{t2}, 4, v{t2}
    v_lshl_add_u32 v{vKd[0]}, v{t0}, 8, v{t2}''')
    for j in (1,2,3): e(f'v_xor_b32 v{vKd[j]}, {j*64}, v{vKd[0]}')
    e(f'''v_lshrrev_b32 v{t2}, 3, v0
    v_and_b32 v{t3}, 7, v0
    v_xor_b32 v{t3}, v{t3}, v{t0}
    v_lshlrev_b32 v{t3}, 4, v{t3}
    v_lshl_add_u32 v{vXd[0]}, v{t2}, 10, v{t3}''')
    for t in range(1,6):
        e(f'v_add_u32 v{vXd[t]}, {t*8192}, v{vXd[0]}')
        if t&1: e(f'v_xor_b32 v{vXd[t]}, 64, v{vXd[t]}')
    e(f'''s_mul_i32 {s_xo}, {sw}, 49152
    s_lshl_b32 {s_wo}, {sqh}, 18
    s_lshl_b32 s31, s7, 8
    s_add_u32 {s_wo}, {s_wo}, s31
    s_mul_i32 {s_xm}, {sw}, 6144
    s_lshl_b32 {s_wm}, {shh}, 14
    s_lshl_b32 s31, {sqh}, 13
    s_add_u32 {s_wm}, {s_wm}, s31
    s_lshl_b32 {s_hq}, {shh}, 14
    s_lshl_b32 s31, {sqh}, 12
    s_add_u32 {s_hq}, {s_hq}, s31''')

def chunk_dma(buf):
    g=[]
    xb=X1 if buf else X0; wb=W1 if buf else W0
    for t in range(6): g.append([f's_add_u32 m0, {s_xm}, {xb+t*1024}','s_nop 0',dma(vXd[t],sX,s_xo)])
    for t in range(8): g.append([f's_add_u32 m0, {s_wm}, {wb+t*1024}','s_nop 0',dma(vWd[t],sW,s_wo)])
    g.append([f's_add_u32 {s_xo}, {s_xo}, 128', f's_add_u32 {s_wo}, {s_wo}, {64*8192}'])
    return g

def read_addrs(e):
    t0,t1,t2,t3,t4,t5=vT
    e(f'''v_and_b32 v{t0}, 31, v0
    v_lshrrev_b32 v{t1}, 5, v0''')
    e(f'''v_bfe_u32 v{t2}, v{t0}, 1, 3
    v_xor_b32 v{t2}, v{t2}, v{t1}
    v_lshlrev_b32 v{t2}, 4, v{t2}
    v_lshl_add_u32 v{t2}, v{t0}, 7, v{t2}
    s_mul_i32 s31, {sqh}, 12288
    v_add_u32 v{vXr0[0]}, s31, v{t2}''')
    for kk in (1,2,3): e(f'v_xor_b32 v{vXr0[kk]}, {kk*32}, v{vXr0[0]}')
    for kk in range(4): e(f'v_add_u32 v{vXr1[kk]}, {X1}, v{vXr0[kk]}')
    e(f'''v_and_b32 v{t2}, 19, v{t0}
    v_bfe_u32 v{t3}, v{t0}, 2, 1
    v_lshl_or_b32 v{t2}, v{t3}, 3, v{t2}
    v_bfe_u32 v{t3}, v{t0}, 3, 1
    v_lshl_or_b32 v{t2}, v{t3}, 2, v{t2}
    v_and_b32 v{t3}, 15, v{t2}
    v_xor_b32 v{t3}, v{t3}, v{t1}
    v_lshlrev_b32 v{t3}, 4, v{t3}
    v_lshl_add_u32 v{t3}, v{t2}, 8, v{t3}
    s_lshl_b32 s31, {shh}, 13
    s_add_u32 s31, s31, {KM1}
    v_add_u32 v{vKr[0]}, s31, v{t3}''')
    for kk in range(1,8): e(f'v_xor_b32 v{vKr[kk]}, {kk*32}, v{vKr[0]}')
    e(f'''v_bfe_u32 v{t2}, v0, 2, 2
    v_lshl_add_u32 v{t3}, v{t1}, 3, v{t2}
    v_lshlrev_b32 v{t3}, 8, v{t3}
    v_lshl_or_b32 v{t3}, v{t2}, 6, v{t3}
    v_bfe_u32 v{t4}, v0, 4, 1
    v_lshl_or_b32 v{t3}, v{t4}, 5, v{t3}
    v_and_b32 v{t4}, 1, v0
    v_lshl_or_b32 v{t3}, v{t4}, 4, v{t3}
    v_bfe_u32 v{t4}, v0, 1, 1
    v_lshl_or_b32 v{t3}, v{t4}, 3, v{t3}
    s_lshl_b32 s31, {shh}, 14
    s_add_u32 s51, s31, {W0}
    s_add_u32 s31, s31, {slot(0)}''')
    for mt in range(4):
        e(f'v_xor_b32 v{t4}, {mt*64}, v{t3}')
        e(f'v_add_u32 v{vWr[mt]}, s51, v{t4}')
        e(f'v_add_u32 v{vVr[mt]}, s31, v{t4}')

FA=[192,220]; FBq=[208,236]
def qreads(buf,kk,fb):
    xr=(vXr1 if buf else vXr0)[kk]
    def rb(nt): b=FBq[fb]+4*nt; return f'ds_read_b128 a[{b}:{b+3}], v{xr} offset:{nt*4096}'
    def ra(mt,rd): b=FA[fb]+4*mt+2*rd; return f'ds_read_b64_tr_b16 a[{b}:{b+1}], v{vWr[mt]} offset:{buf*32768+kk*4096+rd*1024}'
    return [rb(0),ra(0,0),ra(0,1),rb(1),rb(2),ra(1,0),ra(1,1),ra(2,0),ra(2,1),ra(3,0),ra(3,1)]
def qchunk(buf, dmas, wait, zero=None, last=False):
    out=[]
    for kk in range(4):
        fb=kk&1
        mf=[]
        for mt in range(4):
            for nt in range(3):
                a=QB+(nt*4+mt)*16
                mf.append(f'v_mfma_f32_32x32x16_bf16 v[{a}:{a+15}], a[{FA[fb]+4*mt}:{FA[fb]+4*mt+3}], a[{FBq[fb]+4*nt}:{FBq[fb]+4*nt+3}], v[{a}:{a+15}]')
        gaps={g:[] for g in range(12)}
        pre=['s_waitcnt lgkmcnt(0)']
        if kk==3:
            pre+=wait+['s_barrier']
            rd=[] if last else qreads(1-buf,0,1-fb)
        else: rd=qreads(buf,kk+1,1-fb)
        for i,r in enumerate(rd): gaps[i//2].append(r)
        if kk==3:
            gl=list(dmas)
            if last: slots=list(range(12))*3
            else: slots=[6,7,8,9,10,11,0,1,2,3,4,5,6,7,8,9,10,11,10,11,11,11]
            if not last:
                slots=[0,1,2,3,4,5,6,6,7,7,8,8,9,9,10,10,11,11,11,11]
            else: slots=[0,0,1,1,2,3,4,4,5,6,7,7,8,9,10,10,11,11,11,11,11,11]
            for i,g in enumerate(gl): gaps[slots[i]]+=g
        elif zero is not None:
            for g in range(12):
                for _ in range(3):
                    if zero: gaps[g].append(f'v_accvgpr_write_b32 a{zero.pop(0)}, 0')
        out+=weave(mf,gaps,pre)
    return out

def softmax_ops(nt,site):
    s=S(nt); g={}
    def add(k,*ops): g.setdefault(k,[]).extend(ops)
    m1,m2=vM1,vM2
    add(3,f'v_max3_f32 v{m1}, v{s}, v{s+1}, v{s+2}',f'v_max3_f32 v{m2}, v{s+3}, v{s+4}, v{s+5}',f'v_max3_f32 v{m1}, v{m1}, v{s+6}, v{s+7}')
    add(4,f'v_max3_f32 v{m2}, v{m2}, v{s+8}, v{s+9}',f'v_max3_f32 v{m1}, v{m1}, v{s+10}, v{s+11}',f'v_max3_f32 v{m2}, v{m2}, v{s+12}, v{s+13}',f'v_max3_f32 v{m1}, v{m1}, v{s+14}, v{s+15}')
    add(5,f'v_max_f32 v{m1}, v{m1}, v{m2}',f'v_cmp_lt_f32 vcc, {sT[nt]}, v{m1}',f's_cbranch_vccnz slow_{site}',f'back_{site}:')
    eg=[5,6,6,7,8,9,10,11, 12,13,14,15,16,16,17,17]
    for i in range(16):
        add(eg[i],f'v_exp_f32 v{s+i}, v{s+i}')
    for i in range(16):
        add(eg[i]+1,f'v_add_f32 v{vL[nt]}, v{vL[nt]}, v{s+i}')
    for i in range(8):
        add(eg[2*i+1]+1,f'v_cvt_pk_bf16_f32 v{P(nt,i)}, v{s+2*i}, v{s+2*i+1}')
    return g
def slow_path(e,nt,site):
    s=S(nt); n=NEG(nt); t0,t1=vT[0],vT[1]
    e(f'''slow_{site}:
    v_mov_b32 v{t0}, v{vM1}
    s_nop 1
    v_permlane32_swap_b32 v{t0}, v{vM1}
    s_nop 1
    v_max_f32 v{t0}, v{t0}, v{vM1}
    v_max_f32 v{t0}, {sF[nt]}, v{t0}''')
    for i in range(16): e(f'v_sub_f32 v{s+i}, v{s+i}, v{t0}')
    for i in range(16): e(f'v_sub_f32 v{n+i}, v{n+i}, v{t0}')
    e(f'''s_cmp_lg_u32 {sF[nt]}, 0
    s_cbranch_scc1 slowx_{site}
    v_sub_f32 v{t1}, 0, v{t0}
    v_exp_f32 v{t1}, v{t1}
    s_nop 7
    s_nop 7
    v_mul_f32 v{vL[nt]}, v{vL[nt]}, v{t1}''')
    for r in range(64):
        a=Oacc(nt,0)+r; tt=vT[2+(r&3)]
        e(f'v_accvgpr_read_b32 v{tt}, a{a}')
        e(f'v_mul_f32 v{tt}, v{tt}, v{t1}')
        e(f'v_accvgpr_write_b32 a{a}, v{tt}')
    e(f'''slowx_{site}:
    s_mov_b32 {sT[nt]}, {f2u(THR):#x}
    s_mov_b32 {sF[nt]}, 0
    s_nop 1
    s_branch back_{site}''')

def pv(nt):
    return [f'v_mfma_f32_32x32x16_bf16 a[{Oacc(nt,mt)}:{Oacc(nt,mt)+15}], a[{VF+(ks*4+mt)*4}:{VF+(ks*4+mt)*4+3}], v[{P(nt,4*ks)}:{P(nt,4*ks)+3}], a[{Oacc(nt,mt)}:{Oacc(nt,mt)+15}]' for ks in (0,1) for mt in range(4)]
def qk(nt):
    r=[]
    for kk in range(8):
        c=NEG(nt) if kk==0 else S(nt)
        r.append(f'v_mfma_f32_32x32x16_bf16 v[{S(nt)}:{S(nt)+15}], a[{KF+4*kk}:{KF+4*kk+3}], {Qf(nt,kk)}, v[{c}:{c+15}]')
    return r
def vreads(g):
    ks,mt=g//4,g%4; b=VF+g*4
    return [f'ds_read_b64_tr_b16 a[{b+2*rd}:{b+2*rd+1}], v{vVr[mt]} offset:{ks*4096+rd*1024}' for rd in (0,1)]
def kread(kk): return f'ds_read_b128 a[{KF+4*kk}:{KF+4*kk+3}], v{vKr[kk]}'

def period(kind, sm, pvn, qkn, G, base, site, dmas=None):
    mf=(pv(pvn) if pvn is not None else [None]*8)+(qk(qkn) if qkn is not None else [None]*8)
    pre=[]
    if sm is not None:
        for k,ops in softmax_ops(sm,site).items(): G.setdefault(base+k,[]).extend(ops)
    def add(k,ops): G.setdefault(base+k,[]).extend(ops)
    if kind=='B':
        pre=['s_waitcnt vmcnt(24)','s_barrier']
        for g in range(8): add(g,vreads(g))
        d=dmas if dmas is not None else stage_dma()
        for i,k in enumerate((9,11,13,15)): add(k,d[i])
        for mt in range(4): add(8+mt*2,[f'v_add_u32 v{vVr[mt]}, {s_delta}, v{vVr[mt]}'])
    if kind=='C':
        pre=['s_waitcnt lgkmcnt(0)']
        d=stage_dma()
        for i,k in enumerate((0,2,6,7)): add(k,d[4+i])
        add(9,stage_adv())
        for kk in range(8): add(8+kk,[kread(kk)])
    if kind=='A':
        for kk in range(8): add(kk if kk<3 else kk+3,[f'v_add_u32 v{vKr[kk]}, {s_delta}, v{vKr[kk]}'])
        add(7,['s_waitcnt lgkmcnt(0)'])
        add(12,[f's_add_u32 {s_rs}, {s_rs}, 32768', f's_cmp_ge_u32 {s_rs}, 163840', f's_cselect_b32 {s_delta}, 163840, 0',
                f's_sub_u32 {s_rs}, {s_rs}, {s_delta}', f's_sub_u32 {s_delta}, 32768, {s_delta}'])
    return mf,pre
def emit_periods(plist,G,base0):
    out=[]
    for i,(mf,pre) in enumerate(plist):
        out+=pre
        for g,m in enumerate(mf):
            if m: out.append(m)
            out+=G.get(base0+16*i+g,[])
    return out

def gen_k1(dbg=False):
    e=Em(); slow=[]
    e('k1_kernel:')
    setup(e)
    for buf in (0,1):
        for g in chunk_dma(buf): e('\n'.join(g))
    e(f'''s_lshl_b32 s31, {shh}, 13
    s_lshl_b32 s51, {sqh}, 12
    s_add_u32 s31, s31, s51
    s_add_u32 {s_dm}, s31, {KM1-8192}
    s_mov_b32 {s_kso}, s51
    s_mov_b32 {s_vso}, s51''')
    for g in stage_dma(k_only=True): e('\n'.join(g))
    e(f'''s_add_u32 {s_kso}, {s_kso}, 8192
    s_add_u32 {s_dm}, {s_hq}, {slot(0)}''')
    for g in stage_dma(): e('\n'.join(g))
    e('\n'.join(stage_adv()))
    t0,t1=vT[0],vT[1]
    e(f'''s_and_b32 s31, s6, 3
    s_mul_i32 s31, s31, 49152
    s_lshl_b32 s51, {sw}, 14
    s_add_u32 s31, s31, s51
    v_lshlrev_b32 v{t0}, 7, v0
    buffer_load_dword v{vWarm[0]}, v{t0}, {sX}, s31 offen
    s_add_u32 s31, s31, 8192
    buffer_load_dword v{vWarm[1]}, v{t0}, {sX}, s31 offen
    v_lshrrev_b32 v{t1}, 2, v0
    v_and_b32 v{t0}, 3, v0
    v_lshlrev_b32 v{t0}, 7, v{t0}
    v_lshl_add_u32 v{t0}, v{t1}, 13, v{t0}
    s_lshl_b32 s31, s5, 19
    s_lshl_b32 s51, {sw}, 17
    s_add_u32 s31, s31, s51
    s_lshl_b32 s51, s6, 9
    s_add_u32 s31, s31, s51
    buffer_load_dword v{vWarm[2]}, v{t0}, {sW}, s31 offen''')
    read_addrs(e)
    for r in range(64,256): e(f'v_mov_b32 v{r}, 0')
    e(f'''s_mov_b32 {sT[0]}, 0xff800000
    s_mov_b32 {sT[1]}, 0xff800000
    s_mov_b32 {sT[2]}, 0xff800000
    s_mov_b32 {sF[0]}, 0xff800000
    s_mov_b32 {sF[1]}, 0xff800000
    s_mov_b32 {sF[2]}, 0xff800000
    s_mov_b32 {s_cnt}, 0
    s_waitcnt vmcnt({14+12+3})
    s_barrier''')
    for r in qreads(0,0,0): e(r)
    e('k1_qloop:')
    w0=['s_waitcnt vmcnt(15)',f's_cmp_eq_u32 {s_cnt}, 0','s_cbranch_scc1 k1_q0','s_waitcnt vmcnt(0)','k1_q0:']
    body=qchunk(0,chunk_dma(0),w0)+qchunk(1,chunk_dma(1),['s_waitcnt vmcnt(0)'])
    check(body+body,'qloop')
    e('\n'.join(body))
    e(f'''s_add_u32 {s_cnt}, {s_cnt}, 1
    s_cmp_lt_u32 {s_cnt}, 3
    s_cbranch_scc1 k1_qloop''')
    zero=list(range(192))
    d6=stage_dma()+[stage_adv()]
    d7=stage_dma()+[stage_adv()]+stage_dma()+[stage_adv()]
    tail=qchunk(0,d6,['s_waitcnt vmcnt(0)'],zero)+qchunk(1,d7,[],zero,last=True)
    assert not zero
    post=[]
    post+=[kread(kk) for kk in range(8)]
    post+=[f's_lshl_b32 s31, {shh}, 13', f's_add_u32 s31, s31, {slot(0)+8192-KM1}']
    post+=['s_nop 7']
    for kk in range(8): post.append(f'v_add_u32 v{vKr[kk]}, s31, v{vKr[kk]}')
    post+=[f's_mov_b32 {s_c}, {f2u(CSCALE):#x}', f's_mov_b32 s51, {f2u(CSCALE):#x}']
    for nt in range(3):
        for mt in range(4):
            src=QB+(nt*4+mt)*16; dst=QB+nt*32+mt*8
            for i in range(8): post.append(f'v_mul_f32 v{src+2*i}, {s_c}, v{src+2*i}'); post.append(f'v_mul_f32 v{src+2*i+1}, {s_c}, v{src+2*i+1}')
            for i in range(8): post.append(f'v_cvt_pk_bf16_f32 v{dst+i}, v{src+2*i}, v{src+2*i+1}')
    for r in range(NB,NB+48): post.append(f'v_mov_b32 v{r}, 0')
    for r in vL: post.append(f'v_mov_b32 v{r}, 0')
    post+=[f's_mov_b32 {s_rs}, {slot(1)}', f's_mov_b32 {s_delta}, {(slot(1)-slot(0))&0xffffffff:#x}', 's_waitcnt lgkmcnt(0)']
    post+=qk(0)
    if dbg=='q':
        e('\n'.join(tail+post[:-8]))
        for nt in range(3):
            for kk in range(8):
                e(f's_mov_b32 {s_tmp}, {nt*262144+kk*1024}')
                e(f'buffer_store_dwordx4 {Qf(nt,kk)}, v{vO16}, {sO}, {s_tmp} offen')
        e('s_waitcnt vmcnt(0)\nk1_end:\ns_endpgm')
        return e.text()
    if dbg=='s':
        e('\n'.join(tail+post))
        e('s_nop 15')
        for i in range(4):
            e(f's_mov_b32 {s_tmp}, {i*1024}')
            e(f'buffer_store_dwordx4 v[{S(0)+4*i}:{S(0)+4*i+3}], v{vO16}, {sO}, {s_tmp} offen')
        for i in range(8):
            e(f's_mov_b32 {s_tmp}, {(4+i)*1024}')
            e(f'buffer_store_dwordx4 a[{KF+4*i}:{KF+4*i+3}], v{vO16}, {sO}, {s_tmp} offen')
        e('s_waitcnt vmcnt(0)\nk1_end:\ns_endpgm')
        return e.text()
    G={}
    p0=period('B',0,None,1,G,0,'p0'); p0=(p0[0],['s_nop 7']+p0[1])
    p1=period('C',1,0,2,G,16,'p1')
    pro=emit_periods([p0,p1],G,0)
    e('\n'.join(tail+post+pro))
    G={}
    pA=period('A',2,1,0,G,0,'a'); pB=period('B',0,2,1,G,16,'b'); pC=period('C',1,0,2,G,32,'c')
    for k in [k for k in G if k>=48]:
        G[k-48]=G.pop(k)+G.get(k-48,[])
    body=emit_periods([pA,pB,pC],G,0)
    check(tail+post+pro+body+body,'attn')
    e(f's_mov_b32 {s_cnt}, 0')
    e('k1_aloop:')
    e('\n'.join(body))
    e(f'''s_add_u32 {s_cnt}, {s_cnt}, 1
    s_cmp_lt_u32 {s_cnt}, 15
    s_cbranch_scc1 k1_aloop''')
    G={}
    for k,ops in softmax_ops(1,'x').items():
        if k>=16: G[k-16]=list(ops)
    pE=period('E',2,1,None,G,0,'e')
    ep=emit_periods([pE],G,0)
    for k in (16,17,18,19): ep+=G.get(k,[])
    ep+=['s_nop 1']+pv(2)
    fin=[]
    t0,t1=vT[0],vT[1]
    for nt in range(3):
        fin+=[f'v_mov_b32 v{t0}, v{vL[nt]}','s_nop 1',f'v_permlane32_swap_b32 v{t0}, v{vL[nt]}','s_nop 1',
              f'v_add_f32 v{t0}, v{t0}, v{vL[nt]}',f'v_rcp_f32 v{vL[nt]}, v{t0}']
    fin+=['s_nop 7']
    k=0
    for nt in range(3):
        for mt in range(4):
            for j1 in (0,1):
                tb=QB+(k%6)*12; k+=1
                a=Oacc(nt,mt)+8*j1
                for i in range(8): fin.append(f'v_accvgpr_read_b32 v{tb+i}, a{a+i}')
                for i in range(8): fin.append(f'v_mul_f32 v{tb+i}, v{tb+i}, v{vL[nt]}')
                for i in range(4): fin.append(f'v_cvt_pk_bf16_f32 v{tb+8+i}, v{tb+2*i}, v{tb+2*i+1}')
                fin.append(f's_mov_b32 {s_tmp}, {nt*262144+(2*mt+j1)*1024}')
                fin.append(f'buffer_store_dwordx4 v[{tb+8}:{tb+11}], v{vO16}, {sO}, {s_tmp} offen')
    check(body+ep+fin,'epi')
    e('\n'.join(ep+fin))
    e('k1_end:\ns_endpgm')
    for nt,site in ((0,'p0'),(1,'p1'),(2,'a'),(0,'b'),(1,'c'),(2,'e')): slow_path(e,nt,site)
    return e.text()
```

```python
from lib import *
K2_LAUNCH='grid=(256,1,1) block=(256,1,1) lds=131072'
K2_VG=512; K2_ACC=256
P=12; R=16
ACC=64
AF=192
vO=[2,3,4]; vW=[5,6]; vA=[7,8]; vRd=9; vWr=10; vSt=11
sO='s[8:11]'; sW='s[12:15]'; sD='s[16:19]'
sw='s20'; s_o='s21'; s_w='s22'; s_lb='s23'; s_cnt='s24'
def acc(mt,nt): return ACC+(mt*3+nt)*16
def group(g):
    sl=g%R
    r=[]
    for nt in range(3):
        b=sl*12+nt*4
        r.append([f'buffer_load_dwordx4 a[{b}:{b+3}], v{vO[nt]}, {sO}, {s_o} offen'])
    r.append([f's_add_u32 m0, {s_lb}, {sl*2048}',f's_add_u32 {s_o}, {s_o}, 1024',f'buffer_load_dwordx4 v{vW[0]}, {sW}, {s_w} offen lds'])
    r.append([f'buffer_load_dwordx4 v{vW[1]}, {sW}, {s_w} offen offset:1024 lds',f's_add_u32 {s_w}, {s_w}, 16384'])
    return r
def areads(s):
    sl=s%R; fb=s&1
    return [f'ds_read_b64_tr_b16 a[{AF+fb*8+mt*4+rd*2}:{AF+fb*8+mt*4+rd*2+1}], v{vA[mt]} offset:{sl*2048+rd*512}' for mt in range(2) for rd in range(2)]
def step(s, last_group, first=False):
    sl=s%R; fb=s&1
    mf=[]
    for mt in range(2):
        for nt in range(3):
            a=acc(mt,nt); c=f'v[{a}:{a+15}]' if not first else '0'
            mf.append(f'v_mfma_f32_32x32x16_bf16 v[{a}:{a+15}], a[{AF+fb*8+mt*4}:{AF+fb*8+mt*4+3}], a[{sl*12+nt*4}:{sl*12+nt*4+3}], {c}')
    gaps={g:[] for g in range(6)}
    if s+1<=last_group:
        issued=min(s+P-1,last_group)
        n=(issued-(s+1))*5
        gaps[0].append(f's_waitcnt vmcnt({n})')
        rd=areads(s+1)
        gaps[0]+=rd[:2]; gaps[1]+=rd[2:]
    if s+P<=last_group:
        g=group(s+P)
        for i,k in enumerate((1,2,3,4,5)): gaps[k]+=g[i]
    return weave(mf,gaps,['s_waitcnt lgkmcnt(0)'])
def gen_k2():
    e=Em()
    e('k2_kernel:')
    e(f'''s_cmp_ge_u32 s2, 256
    s_cbranch_scc1 k2_end
    s_load_dwordx2 s[28:29], s[0:1], 32
    s_load_dwordx2 s[30:31], s[0:1], 72
    s_load_dwordx2 s[32:33], s[0:1], 80
    s_load_dwordx2 s[34:35], s[0:1], 96
    v_lshrrev_b32 v1, 6, v0
    v_and_b32 v0, 63, v0
    s_and_b32 s3, s2, 1
    v_readfirstlane_b32 {sw}, v1
    s_lshr_b32 s4, s2, 3
    s_bfe_u32 s5, s2, 0x20001
    s_lshl_b32 s5, s5, 2
    s_and_b32 s6, s4, 3
    s_add_u32 s5, s5, s6
    s_lshr_b32 s6, s4, 2''')
    e(f'''v_lshlrev_b32 v{vO[0]}, 4, v0
    v_add_u32 v{vO[1]}, 0x40000, v{vO[0]}
    v_add_u32 v{vO[2]}, 0x80000, v{vO[0]}
    v_lshrrev_b32 v12, 3, v0
    v_and_b32 v13, 7, v0
    v_bfe_u32 v14, v0, 4, 1
    v_lshlrev_b32 v14, 2, v14
    v_xor_b32 v13, v13, v14
    v_lshlrev_b32 v13, 4, v13
    v_lshl_add_u32 v{vW[0]}, v12, 10, v13
    v_add_u32 v{vW[1]}, {8192-1024}, v{vW[0]}
    s_waitcnt lgkmcnt(0)
    s_cmp_eq_u32 s3, 0
    s_cselect_b32 s12, s28, s30
    s_cselect_b32 s13, s29, s31
    s_lshl_b32 s7, s6, 7
    s_add_u32 s12, s12, s7
    s_addc_u32 s13, s13, 0
    s_and_b32 s13, s13, 0xffff
    s_mov_b32 s14, 4194304
    s_mov_b32 s15, 0x20000
    s_mul_i32 s7, s3, 48
    s_mul_i32 s25, s5, 3
    s_add_u32 s7, s7, s25
    s_lshl_b32 s7, s7, 2
    s_add_u32 s7, s7, {sw}
    s_lshl_b32 s7, s7, 16
    s_add_u32 s8, s34, s7
    s_addc_u32 s9, s35, 0
    s_and_b32 s9, s9, 0xffff
    s_mov_b32 s10, {2*262144+65536}
    s_mov_b32 s11, 0x20000
    s_mov_b32 {s_o}, 0
    s_lshl_b32 {s_w}, {sw}, 20
    s_lshl_b32 {s_lb}, {sw}, 15''')
    for g in range(P):
        for x in group(g): e('\n'.join(x))
    e(f'''s_mul_i32 s7, s5, 196608
    s_lshl_b32 s25, s3, 10
    s_add_u32 s7, s7, s25
    s_lshl_b32 s25, s6, 7
    s_add_u32 s7, s7, s25
    s_add_u32 s16, s32, s7
    s_addc_u32 s17, s33, 0
    s_and_b32 s17, s17, 0xffff
    s_mov_b32 s18, 196608
    s_mov_b32 s19, 0x20000
    v_and_b32 v12, 31, v0
    v_lshrrev_b32 v13, 5, v0
    v_lshlrev_b32 v14, 4, v13
    v_lshl_add_u32 v{vSt}, v12, 11, v14
    s_lshl_b32 s7, {sw}, 5
    v_add_u32 v{vSt}, s7, v{vSt}''')
    e(f'''v_bfe_u32 v12, v0, 2, 2
    v_lshl_add_u32 v14, v13, 3, v12
    v_lshlrev_b32 v14, 7, v14
    v_bfe_u32 v15, v0, 3, 1
    v_lshl_or_b32 v14, v15, 6, v14
    v_bfe_u32 v15, v0, 4, 1
    v_lshl_or_b32 v14, v15, 5, v14
    v_and_b32 v15, 1, v0
    v_lshl_or_b32 v14, v15, 4, v14
    v_bfe_u32 v15, v0, 1, 1
    v_lshl_or_b32 v14, v15, 3, v14
    v_add_u32 v{vA[0]}, {s_lb}, v14
    v_xor_b32 v{vA[1]}, 64, v{vA[0]}
    v_lshlrev_b32 v12, 4, v0
    v_add_u32 v{vWr}, {s_lb}, v12
    s_mul_i32 s7, {sw}, 6144
    v_add_u32 v{vRd}, s7, v12''')
    for r in range(ACC,ACC+96): e(f'v_mov_b32 v{r}, 0')
    e(f's_waitcnt vmcnt({(P-1)*5})')
    for r in areads(0): e(r)
    e(f's_mov_b32 {s_cnt}, 0')
    e('k2_loop:')
    body=[]
    for s in range(16): body+=step(s,1000)
    check(body+body,'k2loop')
    e('\n'.join(body))
    e(f'''s_add_u32 {s_cnt}, {s_cnt}, 1
    s_cmp_lt_u32 {s_cnt}, 3
    s_cbranch_scc1 k2_loop''')
    tail=[]
    for s in range(48,64): tail+=step(s,63)
    fin=['s_nop 7','s_nop 7']
    for mt in range(2):
        for half in range(2):
            for nt in range(3):
                for q in range(2):
                    a=acc(mt,nt)+8*half+4*q
                    fin.append(f'ds_write_b128 v{vWr}, v[{a}:{a+3}] offset:{(((mt*2+half)*3+nt)*2+q)*1024}')
    fin+=['s_waitcnt lgkmcnt(0)','s_barrier']
    T=64
    for src in range(4):
        for nt in range(3):
            for q in range(2):
                b=T+((src*3+nt)*2+q)*4
                if src<2: fin.append(f'ds_read_b128 v[{b}:{b+3}], v{vRd} offset:{src*32768+nt*2048+q*1024}')
                else: fin.append(f'ds_read_b128 v[{b}:{b+3}], v12 offset:{(src-2)*32768+nt*2048+q*1024}')
        if src==1: fin.append(f'v_add_u32 v12, 0x10000, v{vRd}')
    for nt in range(3):
        fin.append(f's_waitcnt lgkmcnt({min(15,0)})') if nt==0 else None
        for i in range(8):
            b=lambda src: T+(src*3+nt)*8+i
            fin.append(f'v_add_f32 v{b(0)}, v{b(0)}, v{b(1)}')
            fin.append(f'v_add_f32 v{b(2)}, v{b(2)}, v{b(3)}')
        for i in range(8):
            b=lambda src: T+(src*3+nt)*8+i
            fin.append(f'v_add_f32 v{b(0)}, v{b(0)}, v{b(2)}')
        d=T+96+nt*4
        for i in range(4): fin.append(f'v_cvt_pk_bf16_f32 v{d+i}, v{T+nt*8+2*i}, v{T+nt*8+2*i+1}')
        fin.append(f's_mov_b32 s7, {nt*65536}')
        fin.append(f'buffer_store_dwordx4 v[{d}:{d+3}], v{vSt}, {sD}, s7 offen')
    check(body+tail+fin,'k2tail')
    e('\n'.join(tail+fin))
    e('k2_end:\ns_endpgm')
    return e.text()
```

```python
import re
class Em:
    def __init__(s): s.L=[]
    def __call__(s,t):
        for x in t.split('\n'):
            x=x.strip()
            if x: s.L.append(x)
    def text(s): return '\n'.join(('' if x.endswith(':') else '  ')+x for x in s.L)+'\n'
def regs(tok):
    tok=tok.strip().lstrip('-')
    m=re.fullmatch(r'([va])\[(\d+):(\d+)\]',tok)
    if m: return [(m.group(1),i) for i in range(int(m.group(2)),int(m.group(3))+1)]
    m=re.fullmatch(r'([va])(\d+)',tok)
    if m: return [(m.group(1),int(m.group(2)))]
    return []
TRANS=('v_exp_f32','v_rcp_f32','v_log_f32','v_rsq_f32')
def parse(ins):
    ins=ins.split(';')[0].strip()
    if not ins or ins.endswith(':') or ins.startswith('.'): return None
    p=ins.split(None,1); op=p[0]; ops=[o.strip() for o in p[1].split(',')] if len(p)>1 else []
    ops=[o.split()[0] if o else o for o in ops]
    d=dict(op=op,w=[],r=[],c=[],kind='other',n=1)
    if op.startswith('v_mfma'):
        d['kind']='mfma'; d['w']=regs(ops[0]); d['r']=regs(ops[1])+regs(ops[2]); d['c']=regs(ops[3])
        d['passes']=8 if '32x32' in op else 4
    elif op.startswith('v_cmp'):
        d['kind']='valu'; d['r']=sum((regs(o) for o in ops[1:]),[])
    elif op.startswith('v_permlane32_swap'):
        d['kind']='valu'; d['perm']=True; d['r']=regs(ops[0])+regs(ops[1]); d['w']=list(d['r'])
    elif op.startswith('v_readfirstlane') or op.startswith('v_readlane'):
        d['kind']='valu'; d['rfl']=True; d['r']=regs(ops[1])
    elif op.startswith('v_'):
        d['kind']='valu'; d['w']=regs(ops[0]); d['r']=sum((regs(o) for o in ops[1:]),[])
        if op.startswith('v_fmac') or op.startswith('v_pk_fmac'): d['r']+=d['w']
        d['trans']=op.replace('_e32','').replace('_e64','') in TRANS
    elif op.startswith('ds_read'):
        d['kind']='ds'; d['w']=regs(ops[0]); d['r']=regs(ops[1])
    elif op.startswith('ds_write'):
        d['kind']='ds'; d['r']=sum((regs(o) for o in ops),[])
    elif op.startswith('buffer_load') or op.startswith('global_load'):
        d['kind']='vmem'
        if ' lds' in ins: d['r']=regs(ops[0])
        else: d['w']=regs(ops[0]); d['r']=regs(ops[1])
    elif op.startswith('buffer_store'):
        d['kind']='vmem'; d['r']=regs(ops[0])+regs(ops[1]); d['st']=regs(ops[0])
    elif op=='s_nop':
        d['n']=int(ops[0],0)+1
    return d
def check(lines,name=''):
    P=[(i,parse(l),l) for i,l in enumerate(lines)]; P=[x for x in P if x[1]]
    pos=0; lastv={}; lastm={}; lastc={}; lasttr={}; lastst={}; lastm0=-99; errs=0
    for i,d,l in P:
        def err(m):
            nonlocal errs; errs+=1
            if errs<12: print(f'HAZARD[{name}] {m}: {l}')
        k=d['kind']
        if k=='mfma':
            for r in d['r']+d['c']:
                if pos-lastv.get(r,-99)<3: err(f'valu->mfma {r}')
            for r in d['r']:
                if r in lastm and pos-lastm[r][0]<lastm[r][1]+5-0+ (0):
                    if pos-lastm[r][0]-1 < lastm[r][1]+4: err(f'mfmaD->AB {r}')
            for r in d['c']:
                if r in lastm:
                    same=(lastm[r][2]==tuple(d['c']))
                    if not same and pos-lastm[r][0]-1 < lastm[r][1]+2: err(f'mfmaD->C overlap {r}')
        elif k in('valu','ds','vmem'):
            for r in d['r']+d['w']:
                if r in lastm and pos-lastm[r][0]-1 < lastm[r][1]+4: err(f'mfmaD->use {r} dist {pos-lastm[r][0]-1}')
            if k=='valu':
                for r in d['w']:
                    if r in lastc and pos-lastc[r][0]-1 < lastc[r][1]-1: err(f'mfmaC WAR {r}')
                    if pos-lastst.get(r,-99)-1<2: err(f'store WAR {r}')
                for r in d['r']:
                    if not d.get('trans') and pos-lasttr.get(r,-99)-1<1: err(f'trans->valu {r}')
                    if d.get('perm') and pos-lastv.get(r,-99)-1<2: err(f'valu->perm {r}')
                    if d.get('rfl') and pos-lastv.get(r,-99)-1<1: err(f'valu->rfl {r}')
        if k=='vmem' and ' lds' in l and pos-lastm0-1<1: err('m0->dma')
        if l.startswith('s_mov_b32 m0') or l.startswith('s_add_u32 m0') or l.startswith('s_add_i32 m0'): lastm0=pos
        if k=='valu':
            for r in d['w']:
                lastv[r]=pos; lastm.pop(r,None)
                if d.get('trans'): lasttr[r]=pos
                else: lasttr.pop(r,None)
        if k=='mfma':
            for r in d['w']: lastm[r]=(pos,d['passes'],tuple(d['w']))
            for r in d['c']: lastc[r]=(pos,d['passes'])
        if k in('ds','vmem'):
            for r in d['w']: lastm.pop(r,None); lastv.pop(r,None)
        if d.get('st'):
            for r in d['st']: lastst[r]=pos
        pos+=d['n']
    return errs
def weave(mf, gaps, pre=None):
    out=list(pre or [])
    for g,m in enumerate(mf):
        out.append(m); out+=gaps.get(g,[])
    return out
```

```python
import sys
sys.path.insert(0,'w')
from k1 import gen_k1
try:
    from k2 import gen_k2
except ImportError:
    gen_k2=None
hdr=open('concat_heads__mha_block_cached__mha_block_cached__near_ridge.s.ref').read().split('\n')
hdr=[l for l in hdr if l.startswith(';') and '@launch' not in l and 'Override' not in l and 'grid=ceil' not in l]
def kd(name,vg,acc,sg=102):
    return f'''.amdhsa_kernel {name}
  .amdhsa_next_free_vgpr {vg}
  .amdhsa_next_free_sgpr {sg}
  .amdhsa_accum_offset {acc}
  .amdhsa_group_segment_fixed_size 0
  .amdhsa_kernarg_size 104
  .amdhsa_user_sgpr_count 2
  .amdhsa_user_sgpr_kernarg_segment_ptr 1
  .amdhsa_system_sgpr_workgroup_id_x 1
.end_amdhsa_kernel
'''
only=sys.argv[2] if len(sys.argv)>2 else ''
o='\n'.join(hdr)+'\n'
ks=[]
if only!='k2': ks.append(('k1_kernel',gen_k1(sys.argv[3] if len(sys.argv)>3 else False),'grid=(256,1,1) block=(256,1,1) lds=163840',512,256))
if gen_k2 and only!='k1':
    from k2 import K2_LAUNCH,K2_VG,K2_ACC
    ks.append(('k2_kernel',gen_k2(),K2_LAUNCH,K2_VG,K2_ACC))
for k in ks: o+=f'; @launch kernel={k[0]} {k[2]}\n'
o+='.amdgcn_target "amdgcn-amd-amdhsa--gfx950"\n.text\n'
for k in ks:
    o+=f'.globl {k[0]}\n.p2align 8\n.type {k[0]},@function\n'+k[1]
o+='.section .rodata,"a"\n'
for k in ks: o+='.p2align 6\n'+kd(k[0],k[3],k[4])
open(sys.argv[1],'w').write(o)
print('written',len(o))
```

```python
from lib import *
import struct
def f2u(x): return struct.unpack('<I',struct.pack('<f',x))[0]
X0=0; W0=24576; W1=57344; X1=90112; KM1=114688
def slot(s): return ((s+4)%5)*32768
vKr=list(range(2,10)); vVr=list(range(10,14)); vKd=list(range(14,18)); vVd=18; vL=[19,20,21]; vM1=22; vM2=23; vO16=24
vT=[25,26,27,28,29,30]
vXr0=list(range(32,36)); vXr1=list(range(36,40)); vWr=list(range(40,44)); vXd=list(range(44,50)); vWd=list(range(50,58)); vWarm=[58,59,60]
PB=40
QB=64; NB=160; SB=208
def P(nt,i): return PB+8*nt+i
def Qf(nt,kk): b=QB+(nt*8+kk)*4; return f'v[{b}:{b+3}]'
def NEG(nt): return NB+16*nt
def S(nt): return SB+16*nt
def Oacc(nt,mt): return (nt*4+mt)*16
VF=192; KF=224
sX='s[8:11]'; sW='s[12:15]'; sK='s[16:19]'; sV='s[20:23]'; sO='s[24:27]'
sw,shh,sqh='s28','s29','s30'
sT=['s32','s33','s34']; sF=['s35','s36','s37']
s_xo,s_wo,s_xm,s_wm='s38','s39','s40','s41'
s_vso,s_kso,s_dm,s_delta,s_rs,s_cnt,s_tmp,s_c='s42','s43','s44','s45','s46','s47','s48','s49'
s_hq='s50'
THR=8.0
CSCALE=1.4426950408889634*0.08838834764831845

FL=set()
def dma(v,srd,so,off=0):
    nt=' nt' if ('nt' in FL and srd in (sK,sV)) else ''
    return f'buffer_load_dwordx4 v{v}, {srd}, {so} offen'+(f' offset:{off}' if off else '')+nt+' lds'
def stage_dma(k_only=False,v_only=False):
    g=[]
    if not k_only:
        g.append([f's_mov_b32 m0, {s_dm}','s_nop 0',dma(vVd,sV,s_vso,0)])
        for j in (1,2,3): g.append([dma(vVd,sV,s_vso,j*1024)])
    g.append([f's_add_u32 m0, {s_dm}, 8192','s_nop 0',dma(vKd[0],sK,s_kso,0)])
    for j in (1,2,3): g.append([dma(vKd[j],sK,s_kso,j*1024)])
    return g
def stage_adv():
    return [f's_add_u32 {s_vso}, {s_vso}, 8192', f's_add_u32 {s_kso}, {s_kso}, 8192',
            f's_add_u32 {s_dm}, {s_dm}, 32768', f's_cmp_ge_u32 {s_dm}, 163840',
            f's_cselect_b32 {s_tmp}, 163840, 0', f's_sub_u32 {s_dm}, {s_dm}, {s_tmp}',
            f's_cmp_ge_u32 {s_kso}, 131072', 's_cselect_b32 s18, 0, 131072',
            f's_cmp_ge_u32 {s_vso}, 131072', 's_cselect_b32 s22, 0, 131072']

def setup(e):
    TS2='\n'.join(ts(2,0,grp=1))
    e(f'''s_cmp_ge_u32 s2, 256
    s_cbranch_scc1 k1_end
    s_load_dwordx16 s[52:67], s[0:1], 0
    s_load_dwordx4 s[68:71], s[0:1], 64
    s_load_dwordx2 s[72:73], s[0:1], 96
    v_lshrrev_b32 v1, 6, v0
    v_and_b32 v0, 63, v0
    s_and_b32 s3, s2, 1
    v_readfirstlane_b32 {sw}, v1
    s_lshr_b32 s4, s2, 3
    s_and_b32 s5, s4, 7
    s_lshr_b32 s4, s4, 3
    s_bfe_u32 s6, s2, 0x20001
    s_lshl_b32 s6, s6, 2
    s_add_u32 s6, s6, s4
    s_lshr_b32 {shh}, {sw}, 1
    s_and_b32 {sqh}, {sw}, 1
    s_lshl_b32 s7, s6, 1
    s_add_u32 s7, s7, {shh}
    s_waitcnt lgkmcnt(0)
    {TS2}
    s_cmp_eq_u32 s3, 0
    s_cselect_b32 s8, s52, s62
    s_cselect_b32 s9, s53, s63
    s_cselect_b32 s16, s54, s64
    s_cselect_b32 s17, s55, s65
    s_cselect_b32 s20, s56, s66
    s_cselect_b32 s21, s57, s67
    s_cselect_b32 s12, s58, s68
    s_cselect_b32 s13, s59, s69
    s_mul_i32 s31, s5, 196608
    s_add_u32 s8, s8, s31
    s_addc_u32 s9, s9, 0
    s_and_b32 s9, s9, 0xffff
    s_mov_b32 s10, 196608
    s_mov_b32 s11, 0x20000
    s_and_b32 s13, s13, 0xffff
    s_mov_b32 s14, 4194304
    s_mov_b32 s15, 0x20000
    s_lshl_b32 s31, s5, 5
    s_add_u32 s31, s31, s7
    s_lshl_b32 s51, s31, 17
    s_lshr_b32 s31, s31, 15
    s_add_u32 s16, s16, s51
    s_addc_u32 s17, s17, s31
    s_and_b32 s17, s17, 0xffff
    s_mov_b32 s18, 131072
    s_mov_b32 s19, 0x20000
    s_add_u32 s20, s20, s51
    s_addc_u32 s21, s21, s31
    s_and_b32 s21, s21, 0xffff
    s_mov_b32 s22, 131072
    s_mov_b32 s23, 0x20000
    s_mul_i32 s31, s3, 48
    s_mul_i32 s51, s5, 6
    s_add_u32 s31, s31, s51
    s_mul_i32 s51, {sqh}, 3
    s_add_u32 s31, s31, s51
    s_lshl_b32 s31, s31, 8
    s_lshl_b32 s51, s7, 3
    s_add_u32 s31, s31, s51
    s_lshl_b32 s31, s31, 10
    s_add_u32 s24, s72, s31
    s_addc_u32 s25, s73, 0
    s_and_b32 s25, s25, 0xffff
    s_mov_b32 s26, 786432
    s_mov_b32 s27, 0x20000''')
    t0,t1,t2,t3,t4,t5=vT
    e(f'''v_lshrrev_b32 v{t0}, 4, v0
    v_and_b32 v{t1}, 15, v0
    v_lshlrev_b32 v{vO16}, 4, v0''')
    e(f'''v_lshlrev_b32 v{t2}, 2, v{t0}
    v_xor_b32 v{t2}, v{t1}, v{t2}
    v_lshlrev_b32 v{t2}, 4, v{t2}
    v_lshl_add_u32 v{vVd}, v{t0}, 8, v{t2}
    v_lshl_add_u32 v{vWd[0]}, v{t0}, 13, v{t2}''')
    for t in range(1,8): e(f'v_add_u32 v{vWd[t]}, {t*32768}, v{vWd[0]}')
    e(f'''v_xor_b32 v{t2}, v{t1}, v{t0}
    v_lshlrev_b32 v{t2}, 4, v{t2}
    v_lshl_add_u32 v{vKd[0]}, v{t0}, 8, v{t2}''')
    for j in (1,2,3): e(f'v_xor_b32 v{vKd[j]}, {j*64}, v{vKd[0]}')
    e(f'''v_lshrrev_b32 v{t2}, 3, v0
    v_and_b32 v{t3}, 7, v0
    v_xor_b32 v{t3}, v{t3}, v{t0}
    v_lshlrev_b32 v{t3}, 4, v{t3}
    v_lshl_add_u32 v{vXd[0]}, v{t2}, 10, v{t3}''')
    for t in range(1,6):
        e(f'v_add_u32 v{vXd[t]}, {t*8192}, v{vXd[0]}')
        if t&1: e(f'v_xor_b32 v{vXd[t]}, 64, v{vXd[t]}')
    e(f'''s_mul_i32 {s_xo}, {sw}, 49152
    s_lshl_b32 {s_wo}, {sqh}, 18
    s_lshl_b32 s31, s7, 8
    s_add_u32 {s_wo}, {s_wo}, s31
    s_mul_i32 {s_xm}, {sw}, 6144
    s_lshl_b32 {s_wm}, {shh}, 14
    s_lshl_b32 s31, {sqh}, 13
    s_add_u32 {s_wm}, {s_wm}, s31
    s_lshl_b32 {s_hq}, {shh}, 14
    s_lshl_b32 s31, {sqh}, 12
    s_add_u32 {s_hq}, {s_hq}, s31''')

def chunk_dma(buf):
    g=[]
    xb=X1 if buf else X0; wb=W1 if buf else W0
    for t in range(6): g.append([f's_add_u32 m0, {s_xm}, {xb+t*1024}','s_nop 0',dma(vXd[t],sX,s_xo)])
    for t in range(8): g.append([f's_add_u32 m0, {s_wm}, {wb+t*1024}','s_nop 0',dma(vWd[t],sW,s_wo)])
    g.append([f's_add_u32 {s_xo}, {s_xo}, 128', f's_add_u32 {s_wo}, {s_wo}, {64*8192}'])
    return g

def read_addrs(e):
    t0,t1,t2,t3,t4,t5=vT
    e(f'''v_and_b32 v{t0}, 31, v0
    v_lshrrev_b32 v{t1}, 5, v0''')
    e(f'''v_bfe_u32 v{t2}, v{t0}, 1, 3
    v_xor_b32 v{t2}, v{t2}, v{t1}
    v_lshlrev_b32 v{t2}, 4, v{t2}
    v_lshl_add_u32 v{t2}, v{t0}, 7, v{t2}
    s_mul_i32 s31, {sqh}, 12288
    v_add_u32 v{vXr0[0]}, s31, v{t2}''')
    for kk in (1,2,3): e(f'v_xor_b32 v{vXr0[kk]}, {kk*32}, v{vXr0[0]}')
    for kk in range(4): e(f'v_add_u32 v{vXr1[kk]}, {X1}, v{vXr0[kk]}')
    e(f'''v_and_b32 v{t2}, 19, v{t0}
    v_bfe_u32 v{t3}, v{t0}, 2, 1
    v_lshl_or_b32 v{t2}, v{t3}, 3, v{t2}
    v_bfe_u32 v{t3}, v{t0}, 3, 1
    v_lshl_or_b32 v{t2}, v{t3}, 2, v{t2}
    v_and_b32 v{t3}, 15, v{t2}
    v_xor_b32 v{t3}, v{t3}, v{t1}
    v_lshlrev_b32 v{t3}, 4, v{t3}
    v_lshl_add_u32 v{t3}, v{t2}, 8, v{t3}
    s_lshl_b32 s31, {shh}, 13
    s_add_u32 s31, s31, {KM1}
    v_add_u32 v{vKr[0]}, s31, v{t3}''')
    for kk in range(1,8): e(f'v_xor_b32 v{vKr[kk]}, {kk*32}, v{vKr[0]}')
    e(f'''v_bfe_u32 v{t2}, v0, 2, 2
    v_lshl_add_u32 v{t3}, v{t1}, 3, v{t2}
    v_lshlrev_b32 v{t3}, 8, v{t3}
    v_lshl_or_b32 v{t3}, v{t2}, 6, v{t3}
    v_bfe_u32 v{t4}, v0, 4, 1
    v_lshl_or_b32 v{t3}, v{t4}, 5, v{t3}
    v_and_b32 v{t4}, 1, v0
    v_lshl_or_b32 v{t3}, v{t4}, 4, v{t3}
    v_bfe_u32 v{t4}, v0, 1, 1
    v_lshl_or_b32 v{t3}, v{t4}, 3, v{t3}
    s_lshl_b32 s31, {shh}, 14
    s_add_u32 s51, s31, {W0}
    s_add_u32 s31, s31, {slot(0)}''')
    for mt in range(4):
        e(f'v_xor_b32 v{t4}, {mt*64}, v{t3}')
        e(f'v_add_u32 v{vWr[mt]}, s51, v{t4}')
        e(f'v_add_u32 v{vVr[mt]}, s31, v{t4}')

FA=[192,220]; FBq=[208,236]
def qreads(buf,kk,fb):
    xr=(vXr1 if buf else vXr0)[kk]
    def rb(nt): b=FBq[fb]+4*nt; return f'ds_read_b128 a[{b}:{b+3}], v{xr} offset:{nt*4096}'
    def ra(mt,rd): b=FA[fb]+4*mt+2*rd; return f'ds_read_b64_tr_b16 a[{b}:{b+1}], v{vWr[mt]} offset:{buf*32768+kk*4096+rd*1024}'
    return [rb(0),ra(0,0),ra(0,1),rb(1),rb(2),ra(1,0),ra(1,1),ra(2,0),ra(2,1),ra(3,0),ra(3,1)]
def qchunk(buf, dmas, wait, zero=None, last=False):
    out=[]
    for kk in range(4):
        fb=kk&1
        mf=[]
        for mt in range(4):
            for nt in range(3):
                a=QB+(nt*4+mt)*16
                mf.append(f'v_mfma_f32_32x32x16_bf16 v[{a}:{a+15}], a[{FA[fb]+4*mt}:{FA[fb]+4*mt+3}], a[{FBq[fb]+4*nt}:{FBq[fb]+4*nt+3}], v[{a}:{a+15}]')
        gaps={g:[] for g in range(12)}
        pre=['s_waitcnt lgkmcnt(0)']
        if kk==3:
            pre+=wait+['s_barrier']
            rd=[] if last else qreads(1-buf,0,1-fb)
        else: rd=qreads(buf,kk+1,1-fb)
        for i,r in enumerate(rd): gaps[i//2].append(r)
        if kk==3:
            gl=list(dmas)
            if last: slots=list(range(12))*3
            else: slots=[6,7,8,9,10,11,0,1,2,3,4,5,6,7,8,9,10,11,10,11,11,11]
            if not last:
                slots=[0,1,2,3,4,5,6,6,7,7,8,8,9,9,10,10,11,11,11,11]
            else: slots=[0,0,1,1,2,3,4,4,5,6,7,7,8,9,10,10,11,11,11,11,11,11]
            for i,g in enumerate(gl): gaps[slots[i]]+=g
        elif zero is not None:
            for g in range(12):
                for _ in range(3):
                    if zero: gaps[g].append(f'v_accvgpr_write_b32 a{zero.pop(0)}, 0')
        out+=weave(mf,gaps,pre)
    return out

def softmax_ops(nt,site):
    s=S(nt); g={}
    def add(k,*ops): g.setdefault(k,[]).extend(ops)
    m1,m2=vM1,vM2
    add(3,f'v_max3_f32 v{m1}, v{s}, v{s+1}, v{s+2}',f'v_max3_f32 v{m2}, v{s+3}, v{s+4}, v{s+5}',f'v_max3_f32 v{m1}, v{m1}, v{s+6}, v{s+7}')
    add(4,f'v_max3_f32 v{m2}, v{m2}, v{s+8}, v{s+9}',f'v_max3_f32 v{m1}, v{m1}, v{s+10}, v{s+11}',f'v_max3_f32 v{m2}, v{m2}, v{s+12}, v{s+13}',f'v_max3_f32 v{m1}, v{m1}, v{s+14}, v{s+15}')
    add(5,f'v_max_f32 v{m1}, v{m1}, v{m2}',f'v_cmp_lt_f32 vcc, {sT[nt]}, v{m1}',f's_cbranch_vccnz slow_{site}',f'back_{site}:')
    eg=[5,6,6,7,8,9,10,11, 12,13,14,15,16,16,17,17]
    for i in range(16):
        add(eg[i],f'v_exp_f32 v{s+i}, v{s+i}')
    for i in range(16):
        add(eg[i]+1,f'v_add_f32 v{vL[nt]}, v{vL[nt]}, v{s+i}')
    for i in range(8):
        add(eg[2*i+1]+1,f'v_cvt_pk_bf16_f32 v{P(nt,i)}, v{s+2*i}, v{s+2*i+1}')
    return g
def slow_path(e,nt,site):
    s=S(nt); n=NEG(nt); t0,t1=vT[0],vT[1]
    e(f'''slow_{site}:
    v_mov_b32 v{t0}, v{vM1}
    s_nop 1
    v_permlane32_swap_b32 v{t0}, v{vM1}
    s_nop 1
    v_max_f32 v{t0}, v{t0}, v{vM1}
    v_max_f32 v{t0}, {sF[nt]}, v{t0}''')
    for i in range(16): e(f'v_sub_f32 v{s+i}, v{s+i}, v{t0}')
    for i in range(16): e(f'v_sub_f32 v{n+i}, v{n+i}, v{t0}')
    e(f'''s_cmp_lg_u32 {sF[nt]}, 0
    s_cbranch_scc1 slowx_{site}
    v_sub_f32 v{t1}, 0, v{t0}
    v_exp_f32 v{t1}, v{t1}
    s_nop 7
    s_nop 7
    v_mul_f32 v{vL[nt]}, v{vL[nt]}, v{t1}''')
    for r in range(64):
        a=Oacc(nt,0)+r; tt=vT[2+(r&3)]
        e(f'v_accvgpr_read_b32 v{tt}, a{a}')
        e(f'v_mul_f32 v{tt}, v{tt}, v{t1}')
        e(f'v_accvgpr_write_b32 a{a}, v{tt}')
    e(f'''slowx_{site}:
    s_mov_b32 {sT[nt]}, {f2u(THR):#x}
    s_mov_b32 {sF[nt]}, 0
    s_nop 1
    s_branch back_{site}''')

def pv(nt):
    return [f'v_mfma_f32_32x32x16_bf16 a[{Oacc(nt,mt)}:{Oacc(nt,mt)+15}], a[{VF+(ks*4+mt)*4}:{VF+(ks*4+mt)*4+3}], v[{P(nt,4*ks)}:{P(nt,4*ks)+3}], a[{Oacc(nt,mt)}:{Oacc(nt,mt)+15}]' for ks in (0,1) for mt in range(4)]
def qk(nt):
    r=[]
    for kk in range(8):
        c=NEG(nt) if kk==0 else S(nt)
        r.append(f'v_mfma_f32_32x32x16_bf16 v[{S(nt)}:{S(nt)+15}], a[{KF+4*kk}:{KF+4*kk+3}], {Qf(nt,kk)}, v[{c}:{c+15}]')
    return r
def vreads(g):
    ks,mt=g//4,g%4; b=VF+g*4
    return [f'ds_read_b64_tr_b16 a[{b+2*rd}:{b+2*rd+1}], v{vVr[mt]} offset:{ks*4096+rd*1024}' for rd in (0,1)]
def kread(kk): return f'ds_read_b128 a[{KF+4*kk}:{KF+4*kk+3}], v{vKr[kk]}'

def period(kind, sm, pvn, qkn, G, base, site, dmas=None):
    mf=(pv(pvn) if pvn is not None else [None]*8)+(qk(qkn) if qkn is not None else [None]*8)
    pre=[]
    if sm is not None:
        for k,ops in softmax_ops(sm,site).items(): G.setdefault(base+k,[]).extend(ops)
    def add(k,ops): G.setdefault(base+k,[]).extend(ops)
    if kind=='B':
        pre=['s_waitcnt vmcnt(24)','s_barrier']
        for g in range(8): add(g,vreads(g))
        d=dmas if dmas is not None else stage_dma()
        for i,k in enumerate((9,11,13,15)): add(k,d[i])
        for mt in range(4): add(8+mt*2,[f'v_add_u32 v{vVr[mt]}, {s_delta}, v{vVr[mt]}'])
    if kind=='C':
        pre=['s_waitcnt lgkmcnt(0)']
        d=stage_dma()
        for i,k in enumerate((0,2,6,7)): add(k,d[4+i])
        add(9,stage_adv())
        for kk in range(8): add(8+kk,[kread(kk)])
    if kind=='A':
        for kk in range(8): add(kk if kk<3 else kk+3,[f'v_add_u32 v{vKr[kk]}, {s_delta}, v{vKr[kk]}'])
        add(7,['s_waitcnt lgkmcnt(0)'])
        add(12,[f's_add_u32 {s_rs}, {s_rs}, 32768', f's_cmp_ge_u32 {s_rs}, 163840', f's_cselect_b32 {s_delta}, 163840, 0',
                f's_sub_u32 {s_rs}, {s_rs}, {s_delta}', f's_sub_u32 {s_delta}, 32768, {s_delta}'])
    return mf,pre
def emit_periods(plist,G,base0):
    out=[]
    for i,(mf,pre) in enumerate(plist):
        out+=pre
        for g,m in enumerate(mf):
            if m: out.append(m)
            out+=G.get(base0+16*i+g,[])
    return out

def ts(i,dbg,real=False,grp=0):
    if 't' not in FL: return []
    if 2<=i<=8 and (('st' in FL)!=(grp==1)): return []
    return [f's_mem{"real" if real else ""}time s[{74+2*i}:{75+2*i}]']
def ts_dump(e,wsreg='s[72:73]'):
    e('s_waitcnt lgkmcnt(0)')
    e('s_lshl_b32 s31, s2, 2\ns_add_u32 s31, s31, s28\ns_lshl_b32 s31, s31, 6\ns_add_u32 s31, s31, 0x4000000')
    e(f's_add_u32 s96, s72, s31\ns_addc_u32 s97, s73, 0\ns_and_b32 s97, s97, 0xffff\ns_mov_b32 s98, 64\ns_mov_b32 s99, 0x20000')
    for i in range(10): e(f'v_mov_b32 v{2+i}, s{74+2*i}')
    e('v_mov_b32 v1, 0\ns_mov_b64 exec, 1')
    for i in range(10): e(f'buffer_store_dword v{2+i}, v1, s[96:99], 0 offen offset:{4*i}')
def gen_k1(dbg=False):
    FL.clear(); FL.update((dbg or '').split('+'))
    e=Em(); slow=[]
    e('k1_kernel:')
    for x in ts(0,dbg,True)+ts(1,dbg): e(x)
    setup(e)
    for x in ts(3,0,grp=1): e(x)
    for buf in (0,1):
        for g in chunk_dma(buf): e('\n'.join(g))
        if buf==0:
            for x in ts(4,0,grp=1): e(x)
    e(f'''s_lshl_b32 s31, {shh}, 13
    s_lshl_b32 s51, {sqh}, 12
    s_add_u32 s31, s31, s51
    s_add_u32 {s_dm}, s31, {KM1-8192}
    s_mov_b32 {s_kso}, s51
    s_mov_b32 {s_vso}, s51''')
    for g in stage_dma(k_only=True): e('\n'.join(g))
    e(f'''s_add_u32 {s_kso}, {s_kso}, 8192
    s_add_u32 {s_dm}, {s_hq}, {slot(0)}''')
    for g in stage_dma(): e('\n'.join(g))
    e('\n'.join(stage_adv()))
    t0,t1=vT[0],vT[1]
    e(f'''s_and_b32 s31, s6, 3
    s_mul_i32 s31, s31, 49152
    s_lshl_b32 s51, {sw}, 14
    s_add_u32 s31, s31, s51
    v_lshlrev_b32 v{t0}, 7, v0
    buffer_load_dword v{vWarm[0]}, v{t0}, {sX}, s31 offen
    s_add_u32 s31, s31, 8192
    buffer_load_dword v{vWarm[1]}, v{t0}, {sX}, s31 offen
    v_lshrrev_b32 v{t1}, 2, v0
    v_and_b32 v{t0}, 3, v0
    v_lshlrev_b32 v{t0}, 7, v{t0}
    v_lshl_add_u32 v{t0}, v{t1}, 13, v{t0}
    s_lshl_b32 s31, s5, 19
    s_lshl_b32 s51, {sw}, 17
    s_add_u32 s31, s31, s51
    s_lshl_b32 s51, s6, 9
    s_add_u32 s31, s31, s51
    buffer_load_dword v{vWarm[2]}, v{t0}, {sW}, s31 offen''')
    for x in ts(5,0,grp=1): e(x)
    read_addrs(e)
    for r in range(64,256): e(f'v_mov_b32 v{r}, 0')
    e(f'''s_mov_b32 {sT[0]}, 0xff800000
    s_mov_b32 {sT[1]}, 0xff800000
    s_mov_b32 {sT[2]}, 0xff800000
    s_mov_b32 {sF[0]}, 0xff800000
    s_mov_b32 {sF[1]}, 0xff800000
    s_mov_b32 {sF[2]}, 0xff800000
    s_mov_b32 {s_cnt}, 0''')
    for x in ts(6,0,grp=1): e(x)
    e(f's_waitcnt vmcnt({14+12+3})')
    for x in ts(7,0,grp=1): e(x)
    e('s_barrier')
    for x in ts(8,0,grp=1): e(x)
    for x in ts(2,dbg): e(x)
    for r in qreads(0,0,0): e(r)
    e('k1_qloop:')
    w0=['s_waitcnt vmcnt(15)',f's_cmp_eq_u32 {s_cnt}, 0','s_cbranch_scc1 k1_q0','s_waitcnt vmcnt(0)','k1_q0:']
    body=qchunk(0,chunk_dma(0),w0)+qchunk(1,chunk_dma(1),['s_waitcnt vmcnt(0)'])
    check(body+body,'qloop')
    e('\n'.join(body))
    e(f'''s_add_u32 {s_cnt}, {s_cnt}, 1
    s_cmp_lt_u32 {s_cnt}, 3
    s_cbranch_scc1 k1_qloop''')
    for x in ts(3,dbg): e(x)
    zero=list(range(192))
    d6=stage_dma()+[stage_adv()]
    d7=stage_dma()+[stage_adv()]+stage_dma()+[stage_adv()]
    tail=qchunk(0,d6,['s_waitcnt vmcnt(0)'],zero)+qchunk(1,d7,[],zero,last=True)
    assert not zero
    post=ts(4,dbg)
    post+=[kread(kk) for kk in range(8)]
    post+=[f's_lshl_b32 s31, {shh}, 13', f's_add_u32 s31, s31, {slot(0)+8192-KM1}']
    post+=['s_nop 7']
    for kk in range(8): post.append(f'v_add_u32 v{vKr[kk]}, s31, v{vKr[kk]}')
    post+=[f's_mov_b32 {s_c}, {f2u(CSCALE):#x}', f's_mov_b32 s51, {f2u(CSCALE):#x}']
    for nt in range(3):
        for mt in range(4):
            src=QB+(nt*4+mt)*16; dst=QB+nt*32+mt*8
            for i in range(8): post.append(f'v_mul_f32 v{src+2*i}, {s_c}, v{src+2*i}'); post.append(f'v_mul_f32 v{src+2*i+1}, {s_c}, v{src+2*i+1}')
            for i in range(8): post.append(f'v_cvt_pk_bf16_f32 v{dst+i}, v{src+2*i}, v{src+2*i+1}')
    for r in range(NB,NB+48): post.append(f'v_mov_b32 v{r}, 0')
    for r in vL: post.append(f'v_mov_b32 v{r}, 0')
    post+=[f's_mov_b32 {s_rs}, {slot(1)}', f's_mov_b32 {s_delta}, {(slot(1)-slot(0))&0xffffffff:#x}', 's_waitcnt lgkmcnt(0)']
    post+=ts(5,dbg)
    post+=qk(0)
    if dbg=='q':
        e('\n'.join(tail+post[:-8]))
        for nt in range(3):
            for kk in range(8):
                e(f's_mov_b32 {s_tmp}, {nt*262144+kk*1024}')
                e(f'buffer_store_dwordx4 {Qf(nt,kk)}, v{vO16}, {sO}, {s_tmp} offen')
        e('s_waitcnt vmcnt(0)\nk1_end:\ns_endpgm')
        return e.text()
    if dbg=='s':
        e('\n'.join(tail+post))
        e('s_nop 15')
        for i in range(4):
            e(f's_mov_b32 {s_tmp}, {i*1024}')
            e(f'buffer_store_dwordx4 v[{S(0)+4*i}:{S(0)+4*i+3}], v{vO16}, {sO}, {s_tmp} offen')
        for i in range(8):
            e(f's_mov_b32 {s_tmp}, {(4+i)*1024}')
            e(f'buffer_store_dwordx4 a[{KF+4*i}:{KF+4*i+3}], v{vO16}, {sO}, {s_tmp} offen')
        e('s_waitcnt vmcnt(0)\nk1_end:\ns_endpgm')
        return e.text()
    G={}
    p0=period('B',0,None,1,G,0,'p0'); p0=(p0[0],['s_nop 7']+p0[1])
    p1=period('C',1,0,2,G,16,'p1')
    pro=emit_periods([p0,p1],G,0)
    e('\n'.join(tail+post+pro))
    G={}
    pA=period('A',2,1,0,G,0,'a'); pB=period('B',0,2,1,G,16,'b'); pC=period('C',1,0,2,G,32,'c')
    for k in [k for k in G if k>=48]:
        G[k-48]=G.pop(k)+G.get(k-48,[])
    body=emit_periods([pA,pB,pC],G,0)
    check(tail+post+pro+body+body,'attn')
    e(f's_mov_b32 {s_cnt}, 0')
    e('k1_aloop:')
    if 'nodma' in FL: body=[x for x in body if ' lds' not in x]
    if 'nomfma' in FL: body=[x for x in body if not (x.startswith('v_mfma') or x.startswith('v_exp') or x.startswith('v_max') or x.startswith('v_add_f32') or x.startswith('v_cvt') or x.startswith('s_cbranch_vccnz') or x.startswith('v_cmp') or x.startswith('ds_read'))]
    if 'nosm' in FL: body=[x for x in body if not (x.startswith('v_exp') or x.startswith('v_max') or x.startswith('v_add_f32') or x.startswith('v_cvt') or x.startswith('s_cbranch_vccnz') or x.startswith('v_cmp'))]
    for fl,pre in (('noadd',('v_add_f32',)),('nomax',('v_max','v_cmp','s_cbranch_vccnz')),('nobr',('s_cbranch_vccnz',)),('noexp',('v_exp',)),('nobar',('s_barrier',)),('nods',('ds_read',)),('nocvt',('v_cvt',)),('nosalu',('s_add','s_cmp','s_csel','s_sub','s_mov_b32 m0','s_nop'))):
        if fl in FL: body=[x for x in body if not x.startswith(pre)]
    e('\n'.join(body))
    e(f'''s_add_u32 {s_cnt}, {s_cnt}, 1
    s_cmp_lt_u32 {s_cnt}, 15
    s_cbranch_scc1 k1_aloop''')
    for x in ts(6,dbg): e(x)
    G={}
    for k,ops in softmax_ops(1,'x').items():
        if k>=16: G[k-16]=list(ops)
    pE=period('E',2,1,None,G,0,'e')
    ep=emit_periods([pE],G,0)
    for k in (16,17,18,19): ep+=G.get(k,[])
    ep+=['s_nop 1']+pv(2)
    fin=[]
    t0,t1=vT[0],vT[1]
    for nt in range(3):
        fin+=[f'v_mov_b32 v{t0}, v{vL[nt]}','s_nop 1',f'v_permlane32_swap_b32 v{t0}, v{vL[nt]}','s_nop 1',
              f'v_add_f32 v{t0}, v{t0}, v{vL[nt]}',f'v_rcp_f32 v{vL[nt]}, v{t0}']
    fin+=['s_nop 7']
    k=0
    for nt in range(3):
        for mt in range(4):
            for j1 in (0,1):
                tb=QB+(k%6)*12; k+=1
                a=Oacc(nt,mt)+8*j1
                for i in range(8): fin.append(f'v_accvgpr_read_b32 v{tb+i}, a{a+i}')
                for i in range(8): fin.append(f'v_mul_f32 v{tb+i}, v{tb+i}, v{vL[nt]}')
                for i in range(4): fin.append(f'v_cvt_pk_bf16_f32 v{tb+8+i}, v{tb+2*i}, v{tb+2*i+1}')
                fin.append(f's_mov_b32 {s_tmp}, {nt*262144+(2*mt+j1)*1024}')
                fin.append(f'buffer_store_dwordx4 v[{tb+8}:{tb+11}], v{vO16}, {sO}, {s_tmp} offen')
    check(body+ep+fin,'epi')
    e('\n'.join(ep+ts(7,dbg)+fin+ts(8,dbg)))
    if 't' in FL:
        e('s_waitcnt vmcnt(0)')
        for x in ts(9,dbg,True): e(x)
        ts_dump(e)
    e('k1_end:\ns_endpgm')
    for nt,site in ((0,'p0'),(1,'p1'),(2,'a'),(0,'b'),(1,'c'),(2,'e')): slow_path(e,nt,site)
    return e.text()
```

```python
from lib import *
K2_LAUNCH='grid=(256,1,1) block=(256,1,1) lds=131072'
K2_VG=512; K2_ACC=256
import os
P=int(os.environ.get('K2P','12')); R=16
NTW=' nt' if os.environ.get('K2NTW') else ''
NTO=' nt' if os.environ.get('K2NTO') else ''
ACC=64
AF=192
vO=[2,3,4]; vW=[5,6]; vA=[7,8]; vRd=9; vWr=10; vSt=11
sO='s[8:11]'; sW='s[12:15]'; sD='s[16:19]'
sw='s20'; s_o='s21'; s_w='s22'; s_lb='s23'; s_cnt='s24'
def acc(mt,nt): return ACC+(mt*3+nt)*16
def group(g):
    sl=g%R
    r=[]
    for nt in range(3):
        b=sl*12+nt*4
        r.append([f'buffer_load_dwordx4 a[{b}:{b+3}], v{vO[nt]}, {sO}, {s_o} offen{NTO}'])
    r.append([f's_add_u32 m0, {s_lb}, {sl*2048}',f's_add_u32 {s_o}, {s_o}, 1024',f'buffer_load_dwordx4 v{vW[0]}, {sW}, {s_w} offen{NTW} lds'])
    r.append([f'buffer_load_dwordx4 v{vW[1]}, {sW}, {s_w} offen offset:1024{NTW} lds',f's_add_u32 {s_w}, {s_w}, 16384'])
    return r
def areads(s):
    sl=s%R; fb=s&1
    return [f'ds_read_b64_tr_b16 a[{AF+fb*8+mt*4+rd*2}:{AF+fb*8+mt*4+rd*2+1}], v{vA[mt]} offset:{sl*2048+rd*512}' for mt in range(2) for rd in range(2)]
def step(s, last_group, first=False):
    sl=s%R; fb=s&1
    mf=[]
    for mt in range(2):
        for nt in range(3):
            a=acc(mt,nt); c=f'v[{a}:{a+15}]' if not first else '0'
            mf.append(f'v_mfma_f32_32x32x16_bf16 v[{a}:{a+15}], a[{AF+fb*8+mt*4}:{AF+fb*8+mt*4+3}], a[{sl*12+nt*4}:{sl*12+nt*4+3}], {c}')
    gaps={g:[] for g in range(6)}
    if s+1<=last_group:
        issued=min(s+P-1,last_group)
        n=(issued-(s+1))*5
        gaps[0].append(f's_waitcnt vmcnt({n})')
        rd=areads(s+1)
        gaps[0]+=rd[:2]; gaps[1]+=rd[2:]
    if s+P<=last_group:
        g=group(s+P)
        for i,k in enumerate((1,2,3,4,5)): gaps[k]+=g[i]
    return weave(mf,gaps,['s_waitcnt lgkmcnt(0)'])
def gen_k2():
    e=Em()
    e('k2_kernel:')
    e(f'''s_cmp_ge_u32 s2, 256
    s_cbranch_scc1 k2_end
    s_load_dwordx2 s[28:29], s[0:1], 32
    s_load_dwordx2 s[30:31], s[0:1], 72
    s_load_dwordx2 s[32:33], s[0:1], 80
    s_load_dwordx2 s[34:35], s[0:1], 96
    v_lshrrev_b32 v1, 6, v0
    v_and_b32 v0, 63, v0
    s_and_b32 s3, s2, 1
    v_readfirstlane_b32 {sw}, v1
    s_lshr_b32 s4, s2, 3
    s_bfe_u32 s5, s2, 0x20001
    s_lshl_b32 s5, s5, 2
    s_and_b32 s6, s4, 3
    s_add_u32 s5, s5, s6
    s_lshr_b32 s6, s4, 2''')
    e(f'''v_lshlrev_b32 v{vO[0]}, 4, v0
    v_add_u32 v{vO[1]}, 0x40000, v{vO[0]}
    v_add_u32 v{vO[2]}, 0x80000, v{vO[0]}
    v_lshrrev_b32 v12, 3, v0
    v_and_b32 v13, 7, v0
    v_bfe_u32 v14, v0, 4, 1
    v_lshlrev_b32 v14, 2, v14
    v_xor_b32 v13, v13, v14
    v_lshlrev_b32 v13, 4, v13
    v_lshl_add_u32 v{vW[0]}, v12, 10, v13
    v_add_u32 v{vW[1]}, {8192-1024}, v{vW[0]}
    s_waitcnt lgkmcnt(0)
    s_cmp_eq_u32 s3, 0
    s_cselect_b32 s12, s28, s30
    s_cselect_b32 s13, s29, s31
    s_lshl_b32 s7, s6, 7
    s_add_u32 s12, s12, s7
    s_addc_u32 s13, s13, 0
    s_and_b32 s13, s13, 0xffff
    s_mov_b32 s14, 4194304
    s_mov_b32 s15, 0x20000
    s_mul_i32 s7, s3, 48
    s_mul_i32 s25, s5, 3
    s_add_u32 s7, s7, s25
    s_lshl_b32 s7, s7, 2
    s_add_u32 s7, s7, {sw}
    s_lshl_b32 s7, s7, 16
    s_add_u32 s8, s34, s7
    s_addc_u32 s9, s35, 0
    s_and_b32 s9, s9, 0xffff
    s_mov_b32 s10, {2*262144+65536}
    s_mov_b32 s11, 0x20000
    s_mov_b32 {s_o}, 0
    s_lshl_b32 {s_w}, {sw}, 20
    s_lshl_b32 {s_lb}, {sw}, 15''')
    for g in range(P):
        for x in group(g): e('\n'.join(x))
    e(f'''s_mul_i32 s7, s5, 196608
    s_lshl_b32 s25, s3, 10
    s_add_u32 s7, s7, s25
    s_lshl_b32 s25, s6, 7
    s_add_u32 s7, s7, s25
    s_add_u32 s16, s32, s7
    s_addc_u32 s17, s33, 0
    s_and_b32 s17, s17, 0xffff
    s_mov_b32 s18, 196608
    s_mov_b32 s19, 0x20000
    v_and_b32 v12, 31, v0
    v_lshrrev_b32 v13, 5, v0
    v_lshlrev_b32 v14, 4, v13
    v_lshl_add_u32 v{vSt}, v12, 11, v14
    s_lshl_b32 s7, {sw}, 5
    v_add_u32 v{vSt}, s7, v{vSt}''')
    e(f'''v_bfe_u32 v12, v0, 2, 2
    v_lshl_add_u32 v14, v13, 3, v12
    v_lshlrev_b32 v14, 7, v14
    v_bfe_u32 v15, v0, 3, 1
    v_lshl_or_b32 v14, v15, 6, v14
    v_bfe_u32 v15, v0, 4, 1
    v_lshl_or_b32 v14, v15, 5, v14
    v_and_b32 v15, 1, v0
    v_lshl_or_b32 v14, v15, 4, v14
    v_bfe_u32 v15, v0, 1, 1
    v_lshl_or_b32 v14, v15, 3, v14
    v_add_u32 v{vA[0]}, {s_lb}, v14
    v_xor_b32 v{vA[1]}, 64, v{vA[0]}
    v_lshlrev_b32 v12, 4, v0
    v_add_u32 v{vWr}, {s_lb}, v12
    s_mul_i32 s7, {sw}, 6144
    v_add_u32 v{vRd}, s7, v12''')
    for r in range(ACC,ACC+96): e(f'v_mov_b32 v{r}, 0')
    e(f's_waitcnt vmcnt({(P-1)*5})')
    for r in areads(0): e(r)
    e(f's_mov_b32 {s_cnt}, 0')
    e('k2_loop:')
    body=[]
    for s in range(16): body+=step(s,1000)
    check(body+body,'k2loop')
    e('\n'.join(body))
    e(f'''s_add_u32 {s_cnt}, {s_cnt}, 1
    s_cmp_lt_u32 {s_cnt}, 3
    s_cbranch_scc1 k2_loop''')
    tail=[]
    for s in range(48,64): tail+=step(s,63)
    fin=['s_nop 7','s_nop 7']
    for mt in range(2):
        for half in range(2):
            for nt in range(3):
                for q in range(2):
                    a=acc(mt,nt)+8*half+4*q
                    fin.append(f'ds_write_b128 v{vWr}, v[{a}:{a+3}] offset:{(((mt*2+half)*3+nt)*2+q)*1024}')
    fin+=['s_waitcnt lgkmcnt(0)','s_barrier']
    T=64
    for src in range(4):
        for nt in range(3):
            for q in range(2):
                b=T+((src*3+nt)*2+q)*4
                if src<2: fin.append(f'ds_read_b128 v[{b}:{b+3}], v{vRd} offset:{src*32768+nt*2048+q*1024}')
                else: fin.append(f'ds_read_b128 v[{b}:{b+3}], v12 offset:{(src-2)*32768+nt*2048+q*1024}')
        if src==1: fin.append(f'v_add_u32 v12, 0x10000, v{vRd}')
    for nt in range(3):
        fin.append(f's_waitcnt lgkmcnt({min(15,0)})') if nt==0 else None
        for i in range(8):
            b=lambda src: T+(src*3+nt)*8+i
            fin.append(f'v_add_f32 v{b(0)}, v{b(0)}, v{b(1)}')
            fin.append(f'v_add_f32 v{b(2)}, v{b(2)}, v{b(3)}')
        for i in range(8):
            b=lambda src: T+(src*3+nt)*8+i
            fin.append(f'v_add_f32 v{b(0)}, v{b(0)}, v{b(2)}')
        d=T+96+nt*4
        for i in range(4): fin.append(f'v_cvt_pk_bf16_f32 v{d+i}, v{T+nt*8+2*i}, v{T+nt*8+2*i+1}')
        fin.append(f's_mov_b32 s7, {nt*65536}')
        fin.append(f'buffer_store_dwordx4 v[{d}:{d+3}], v{vSt}, {sD}, s7 offen')
    check(body+tail+fin,'k2tail')
    e('\n'.join(tail+fin))
    e('k2_end:\ns_endpgm')
    return e.text()
```

```python
from lib import *
import struct
def f2u(x): return struct.unpack('<I',struct.pack('<f',x))[0]
X0=0; W0=24576; W1=57344; X1=90112; KM1=114688
def slot(s): return ((s+4)%5)*32768
vKr=list(range(2,10)); vVr=list(range(10,14)); vKd=list(range(14,18)); vVd=18; vL=[19,20,21]; vM1=22; vM2=23; vO16=24
vT=[25,26,27,28,29,30]
vXr0=list(range(32,36)); vXr1=list(range(36,40)); vWr=list(range(40,44)); vXd=list(range(44,50)); vWd=list(range(50,58)); vWarm=[58,59,60]
PB=40
QB=64; NB=160; SB=208
def P(nt,i): return PB+8*nt+i
def Qf(nt,kk): b=QB+(nt*8+kk)*4; return f'v[{b}:{b+3}]'
def NEG(nt): return NB+16*nt
def S(nt): return SB+16*nt
def Oacc(nt,mt): return (nt*4+mt)*16
VF=192; KF=224
sX='s[8:11]'; sW='s[12:15]'; sK='s[16:19]'; sV='s[20:23]'; sO='s[24:27]'
sw,shh,sqh='s28','s29','s30'
sT=['s32','s33','s34']; sF=['s35','s36','s37']
s_xo,s_wo,s_xm,s_wm='s38','s39','s40','s41'
s_vso,s_kso,s_dm,s_delta,s_rs,s_cnt,s_tmp,s_c='s42','s43','s44','s45','s46','s47','s48','s49'
s_hq='s50'
THR=8.0
CSCALE=1.4426950408889634*0.08838834764831845

FL=set()
def dma(v,srd,so,off=0):
    nt=' nt' if ('nt' in FL and srd in (sK,sV)) else ''
    return f'buffer_load_dwordx4 v{v}, {srd}, {so} offen'+(f' offset:{off}' if off else '')+nt+' lds'
def stage_dma(k_only=False,v_only=False):
    g=[]
    if not k_only:
        g.append([f's_mov_b32 m0, {s_dm}','s_nop 0',dma(vVd,sV,s_vso,0)])
        for j in (1,2,3): g.append([dma(vVd,sV,s_vso,j*1024)])
    g.append([f's_add_u32 m0, {s_dm}, 8192','s_nop 0',dma(vKd[0],sK,s_kso,0)])
    for j in (1,2,3): g.append([dma(vKd[j],sK,s_kso,j*1024)])
    return g
def stage_adv():
    return [f's_add_u32 {s_vso}, {s_vso}, 8192', f's_add_u32 {s_kso}, {s_kso}, 8192',
            f's_add_u32 {s_dm}, {s_dm}, 32768', f's_cmp_ge_u32 {s_dm}, 163840',
            f's_cselect_b32 {s_tmp}, 163840, 0', f's_sub_u32 {s_dm}, {s_dm}, {s_tmp}',
            f's_cmp_ge_u32 {s_kso}, 131072', 's_cselect_b32 s18, 0, 131072',
            f's_cmp_ge_u32 {s_vso}, 131072', 's_cselect_b32 s22, 0, 131072']

def setup(e):
    TS2='\n'.join(ts(2,0,grp=1))
    e(f'''s_cmp_ge_u32 s2, 256
    s_cbranch_scc1 k1_end
    s_load_dwordx16 s[52:67], s[0:1], 0
    s_load_dwordx4 s[68:71], s[0:1], 64
    s_load_dwordx2 s[72:73], s[0:1], 96
    v_lshrrev_b32 v1, 6, v0
    v_and_b32 v0, 63, v0
    s_and_b32 s3, s2, 1
    v_readfirstlane_b32 {sw}, v1
    s_lshr_b32 s4, s2, 3
    s_and_b32 s5, s4, 7
    s_lshr_b32 s4, s4, 3
    s_bfe_u32 s6, s2, 0x20001
    s_lshl_b32 s6, s6, 2
    s_add_u32 s6, s6, s4
    s_lshr_b32 {shh}, {sw}, 1
    s_and_b32 {sqh}, {sw}, 1
    s_lshl_b32 s7, s6, 1
    s_add_u32 s7, s7, {shh}
    s_waitcnt lgkmcnt(0)
    {TS2}
    s_cmp_eq_u32 s3, 0
    s_cselect_b32 s8, s52, s62
    s_cselect_b32 s9, s53, s63
    s_cselect_b32 s16, s54, s64
    s_cselect_b32 s17, s55, s65
    s_cselect_b32 s20, s56, s66
    s_cselect_b32 s21, s57, s67
    s_cselect_b32 s12, s58, s68
    s_cselect_b32 s13, s59, s69
    s_mul_i32 s31, s5, 196608
    s_add_u32 s8, s8, s31
    s_addc_u32 s9, s9, 0
    s_and_b32 s9, s9, 0xffff
    s_mov_b32 s10, 196608
    s_mov_b32 s11, 0x20000
    s_and_b32 s13, s13, 0xffff
    s_mov_b32 s14, 4194304
    s_mov_b32 s15, 0x20000
    s_lshl_b32 s31, s5, 5
    s_add_u32 s31, s31, s7
    s_lshl_b32 s51, s31, 17
    s_lshr_b32 s31, s31, 15
    s_add_u32 s16, s16, s51
    s_addc_u32 s17, s17, s31
    s_and_b32 s17, s17, 0xffff
    s_mov_b32 s18, 131072
    s_mov_b32 s19, 0x20000
    s_add_u32 s20, s20, s51
    s_addc_u32 s21, s21, s31
    s_and_b32 s21, s21, 0xffff
    s_mov_b32 s22, 131072
    s_mov_b32 s23, 0x20000
    s_mul_i32 s31, s3, 48
    s_mul_i32 s51, s5, 6
    s_add_u32 s31, s31, s51
    s_mul_i32 s51, {sqh}, 3
    s_add_u32 s31, s31, s51
    s_lshl_b32 s31, s31, 8
    s_lshl_b32 s51, s7, 3
    s_add_u32 s31, s31, s51
    s_lshl_b32 s31, s31, 10
    s_add_u32 s24, s72, s31
    s_addc_u32 s25, s73, 0
    s_and_b32 s25, s25, 0xffff
    s_mov_b32 s26, 786432
    s_mov_b32 s27, 0x20000''')
    t0,t1,t2,t3,t4,t5=vT
    e(f'''v_lshrrev_b32 v{t0}, 4, v0
    v_and_b32 v{t1}, 15, v0
    v_lshlrev_b32 v{vO16}, 4, v0''')
    e(f'''v_lshlrev_b32 v{t2}, 2, v{t0}
    v_xor_b32 v{t2}, v{t1}, v{t2}
    v_lshlrev_b32 v{t2}, 4, v{t2}
    v_lshl_add_u32 v{vVd}, v{t0}, 8, v{t2}
    v_lshl_add_u32 v{vWd[0]}, v{t0}, 13, v{t2}''')
    for t in range(1,8): e(f'v_add_u32 v{vWd[t]}, {t*32768}, v{vWd[0]}')
    e(f'''v_xor_b32 v{t2}, v{t1}, v{t0}
    v_lshlrev_b32 v{t2}, 4, v{t2}
    v_lshl_add_u32 v{vKd[0]}, v{t0}, 8, v{t2}''')
    for j in (1,2,3): e(f'v_xor_b32 v{vKd[j]}, {j*64}, v{vKd[0]}')
    e(f'''v_lshrrev_b32 v{t2}, 3, v0
    v_and_b32 v{t3}, 7, v0
    v_xor_b32 v{t3}, v{t3}, v{t0}
    v_lshlrev_b32 v{t3}, 4, v{t3}
    v_lshl_add_u32 v{vXd[0]}, v{t2}, 10, v{t3}''')
    for t in range(1,6):
        e(f'v_add_u32 v{vXd[t]}, {t*8192}, v{vXd[0]}')
        if t&1: e(f'v_xor_b32 v{vXd[t]}, 64, v{vXd[t]}')
    e(f'''s_mul_i32 {s_xo}, {sw}, 49152
    s_lshl_b32 {s_wo}, {sqh}, 18
    s_lshl_b32 s31, s7, 8
    s_add_u32 {s_wo}, {s_wo}, s31
    s_mul_i32 {s_xm}, {sw}, 6144
    s_lshl_b32 {s_wm}, {shh}, 14
    s_lshl_b32 s31, {sqh}, 13
    s_add_u32 {s_wm}, {s_wm}, s31
    s_lshl_b32 {s_hq}, {shh}, 14
    s_lshl_b32 s31, {sqh}, 12
    s_add_u32 {s_hq}, {s_hq}, s31''')

def chunk_dma(buf):
    g=[]
    xb=X1 if buf else X0; wb=W1 if buf else W0
    for t in range(6): g.append([f's_add_u32 m0, {s_xm}, {xb+t*1024}','s_nop 0',dma(vXd[t],sX,s_xo)])
    for t in range(8): g.append([f's_add_u32 m0, {s_wm}, {wb+t*1024}','s_nop 0',dma(vWd[t],sW,s_wo)])
    g.append([f's_add_u32 {s_xo}, {s_xo}, 128', f's_add_u32 {s_wo}, {s_wo}, {64*8192}'])
    return g

def read_addrs(e):
    t0,t1,t2,t3,t4,t5=vT
    e(f'''v_and_b32 v{t0}, 31, v0
    v_lshrrev_b32 v{t1}, 5, v0''')
    e(f'''v_bfe_u32 v{t2}, v{t0}, 1, 3
    v_xor_b32 v{t2}, v{t2}, v{t1}
    v_lshlrev_b32 v{t2}, 4, v{t2}
    v_lshl_add_u32 v{t2}, v{t0}, 7, v{t2}
    s_mul_i32 s31, {sqh}, 12288
    v_add_u32 v{vXr0[0]}, s31, v{t2}''')
    for kk in (1,2,3): e(f'v_xor_b32 v{vXr0[kk]}, {kk*32}, v{vXr0[0]}')
    for kk in range(4): e(f'v_add_u32 v{vXr1[kk]}, {X1}, v{vXr0[kk]}')
    e(f'''v_and_b32 v{t2}, 19, v{t0}
    v_bfe_u32 v{t3}, v{t0}, 2, 1
    v_lshl_or_b32 v{t2}, v{t3}, 3, v{t2}
    v_bfe_u32 v{t3}, v{t0}, 3, 1
    v_lshl_or_b32 v{t2}, v{t3}, 2, v{t2}
    v_and_b32 v{t3}, 15, v{t2}
    v_xor_b32 v{t3}, v{t3}, v{t1}
    v_lshlrev_b32 v{t3}, 4, v{t3}
    v_lshl_add_u32 v{t3}, v{t2}, 8, v{t3}
    s_lshl_b32 s31, {shh}, 13
    s_add_u32 s31, s31, {KM1}
    v_add_u32 v{vKr[0]}, s31, v{t3}''')
    for kk in range(1,8): e(f'v_xor_b32 v{vKr[kk]}, {kk*32}, v{vKr[0]}')
    e(f'''v_bfe_u32 v{t2}, v0, 2, 2
    v_lshl_add_u32 v{t3}, v{t1}, 3, v{t2}
    v_lshlrev_b32 v{t3}, 8, v{t3}
    v_lshl_or_b32 v{t3}, v{t2}, 6, v{t3}
    v_bfe_u32 v{t4}, v0, 4, 1
    v_lshl_or_b32 v{t3}, v{t4}, 5, v{t3}
    v_and_b32 v{t4}, 1, v0
    v_lshl_or_b32 v{t3}, v{t4}, 4, v{t3}
    v_bfe_u32 v{t4}, v0, 1, 1
    v_lshl_or_b32 v{t3}, v{t4}, 3, v{t3}
    s_lshl_b32 s31, {shh}, 14
    s_add_u32 s51, s31, {W0}
    s_add_u32 s31, s31, {slot(0)}''')
    for mt in range(4):
        e(f'v_xor_b32 v{t4}, {mt*64}, v{t3}')
        e(f'v_add_u32 v{vWr[mt]}, s51, v{t4}')
        e(f'v_add_u32 v{vVr[mt]}, s31, v{t4}')

FA=[192,220]; FBq=[208,236]
def qreads(buf,kk,fb):
    xr=(vXr1 if buf else vXr0)[kk]
    def rb(nt): b=FBq[fb]+4*nt; return f'ds_read_b128 a[{b}:{b+3}], v{xr} offset:{nt*4096}'
    def ra(mt,rd): b=FA[fb]+4*mt+2*rd; return f'ds_read_b64_tr_b16 a[{b}:{b+1}], v{vWr[mt]} offset:{buf*32768+kk*4096+rd*1024}'
    return [rb(0),ra(0,0),ra(0,1),rb(1),rb(2),ra(1,0),ra(1,1),ra(2,0),ra(2,1),ra(3,0),ra(3,1)]
def qchunk(buf, dmas, wait, zero=None, last=False):
    out=[]
    for kk in range(4):
        fb=kk&1
        mf=[]
        for mt in range(4):
            for nt in range(3):
                a=QB+(nt*4+mt)*16
                mf.append(f'v_mfma_f32_32x32x16_bf16 v[{a}:{a+15}], a[{FA[fb]+4*mt}:{FA[fb]+4*mt+3}], a[{FBq[fb]+4*nt}:{FBq[fb]+4*nt+3}], v[{a}:{a+15}]')
        gaps={g:[] for g in range(12)}
        pre=['s_waitcnt lgkmcnt(0)']
        if kk==3:
            pre+=wait+['s_barrier']
            rd=[] if last else qreads(1-buf,0,1-fb)
        else: rd=qreads(buf,kk+1,1-fb)
        for i,r in enumerate(rd): gaps[i//2].append(r)
        if kk==3:
            gl=list(dmas)
            if last: slots=list(range(12))*3
            else: slots=[6,7,8,9,10,11,0,1,2,3,4,5,6,7,8,9,10,11,10,11,11,11]
            if not last:
                slots=[0,1,2,3,4,5,6,6,7,7,8,8,9,9,10,10,11,11,11,11]
            else: slots=[0,0,1,1,2,3,4,4,5,6,7,7,8,9,10,10,11,11,11,11,11,11]
            for i,g in enumerate(gl): gaps[slots[i]]+=g
        elif zero is not None:
            for g in range(12):
                for _ in range(3):
                    if zero: gaps[g].append(f'v_accvgpr_write_b32 a{zero.pop(0)}, 0')
        out+=weave(mf,gaps,pre)
    return out

def softmax_ops(nt,site):
    s=S(nt); g={}
    def add(k,*ops): g.setdefault(k,[]).extend(ops)
    m1,m2=vM1,vM2
    add(3,f'v_max3_f32 v{m1}, v{s}, v{s+1}, v{s+2}',f'v_max3_f32 v{m2}, v{s+3}, v{s+4}, v{s+5}',f'v_max3_f32 v{m1}, v{m1}, v{s+6}, v{s+7}')
    add(4,f'v_max3_f32 v{m2}, v{m2}, v{s+8}, v{s+9}',f'v_max3_f32 v{m1}, v{m1}, v{s+10}, v{s+11}',f'v_max3_f32 v{m2}, v{m2}, v{s+12}, v{s+13}',f'v_max3_f32 v{m1}, v{m1}, v{s+14}, v{s+15}')
    add(5,f'v_max_f32 v{m1}, v{m1}, v{m2}',f'v_cmp_lt_f32 vcc, {sT[nt]}, v{m1}',f's_cbranch_vccnz slow_{site}',f'back_{site}:')
    eg=[5,6,6,7,8,9,10,11, 12,13,14,15,16,16,17,17]
    for i in range(16):
        add(eg[i],f'v_exp_f32 v{s+i}, v{s+i}')
    for i in range(16):
        add(eg[i]+1,f'v_add_f32 v{vL[nt]}, v{vL[nt]}, v{s+i}')
    for i in range(8):
        add(eg[2*i+1]+1,f'v_cvt_pk_bf16_f32 v{P(nt,i)}, v{s+2*i}, v{s+2*i+1}')
    return g
def slow_path(e,nt,site):
    s=S(nt); n=NEG(nt); t0,t1=vT[0],vT[1]
    e(f'''slow_{site}:
    v_mov_b32 v{t0}, v{vM1}
    s_nop 1
    v_permlane32_swap_b32 v{t0}, v{vM1}
    s_nop 1
    v_max_f32 v{t0}, v{t0}, v{vM1}
    v_max_f32 v{t0}, {sF[nt]}, v{t0}''')
    for i in range(16): e(f'v_sub_f32 v{s+i}, v{s+i}, v{t0}')
    for i in range(16): e(f'v_sub_f32 v{n+i}, v{n+i}, v{t0}')
    e(f'''s_cmp_lg_u32 {sF[nt]}, 0
    s_cbranch_scc1 slowx_{site}
    v_sub_f32 v{t1}, 0, v{t0}
    v_exp_f32 v{t1}, v{t1}
    s_nop 7
    s_nop 7
    v_mul_f32 v{vL[nt]}, v{vL[nt]}, v{t1}''')
    for r in range(64):
        a=Oacc(nt,0)+r; tt=vT[2+(r&3)]
        e(f'v_accvgpr_read_b32 v{tt}, a{a}')
        e(f'v_mul_f32 v{tt}, v{tt}, v{t1}')
        e(f'v_accvgpr_write_b32 a{a}, v{tt}')
    e(f'''slowx_{site}:
    s_mov_b32 {sT[nt]}, {f2u(THR):#x}
    s_mov_b32 {sF[nt]}, 0
    s_nop 1
    s_branch back_{site}''')

def pv(nt):
    return [f'v_mfma_f32_32x32x16_bf16 a[{Oacc(nt,mt)}:{Oacc(nt,mt)+15}], a[{VF+(ks*4+mt)*4}:{VF+(ks*4+mt)*4+3}], v[{P(nt,4*ks)}:{P(nt,4*ks)+3}], a[{Oacc(nt,mt)}:{Oacc(nt,mt)+15}]' for ks in (0,1) for mt in range(4)]
def qk(nt):
    r=[]
    for kk in range(8):
        c=NEG(nt) if kk==0 else S(nt)
        r.append(f'v_mfma_f32_32x32x16_bf16 v[{S(nt)}:{S(nt)+15}], a[{KF+4*kk}:{KF+4*kk+3}], {Qf(nt,kk)}, v[{c}:{c+15}]')
    return r
def vreads(g):
    ks,mt=g//4,g%4; b=VF+g*4
    return [f'ds_read_b64_tr_b16 a[{b+2*rd}:{b+2*rd+1}], v{vVr[mt]} offset:{ks*4096+rd*1024}' for rd in (0,1)]
def kread(kk): return f'ds_read_b128 a[{KF+4*kk}:{KF+4*kk+3}], v{vKr[kk]}'

def period(kind, sm, pvn, qkn, G, base, site, dmas=None):
    mf=(pv(pvn) if pvn is not None else [None]*8)+(qk(qkn) if qkn is not None else [None]*8)
    pre=[]
    if sm is not None:
        for k,ops in softmax_ops(sm,site).items(): G.setdefault(base+k,[]).extend(ops)
    def add(k,ops): G.setdefault(base+k,[]).extend(ops)
    if kind=='B':
        pre=['s_waitcnt vmcnt(24)','s_barrier']
        for g in range(8): add(g,vreads(g))
        d=dmas if dmas is not None else stage_dma()
        for i,k in enumerate((9,11,13,15)): add(k,d[i])
        for mt in range(4): add(8+mt*2,[f'v_add_u32 v{vVr[mt]}, {s_delta}, v{vVr[mt]}'])
    if kind=='C':
        pre=['s_waitcnt lgkmcnt(0)']
        d=stage_dma()
        for i,k in enumerate((0,2,6,7)): add(k,d[4+i])
        add(9,stage_adv())
        for kk in range(8): add(8+kk,[kread(kk)])
    if kind=='A':
        for kk in range(8): add(kk if kk<3 else kk+3,[f'v_add_u32 v{vKr[kk]}, {s_delta}, v{vKr[kk]}'])
        add(7,['s_waitcnt lgkmcnt(0)'])
        add(12,[f's_add_u32 {s_rs}, {s_rs}, 32768', f's_cmp_ge_u32 {s_rs}, 163840', f's_cselect_b32 {s_delta}, 163840, 0',
                f's_sub_u32 {s_rs}, {s_rs}, {s_delta}', f's_sub_u32 {s_delta}, 32768, {s_delta}'])
    return mf,pre
def emit_periods(plist,G,base0):
    out=[]
    for i,(mf,pre) in enumerate(plist):
        out+=pre
        for g,m in enumerate(mf):
            if m: out.append(m)
            out+=G.get(base0+16*i+g,[])
    return out

def ts(i,dbg,real=False,grp=0):
    if 't' not in FL: return []
    if 2<=i<=8 and (('st' in FL)!=(grp==1)): return []
    return [f's_mem{"real" if real else ""}time s[{74+2*i}:{75+2*i}]']
def ts_dump(e,wsreg='s[72:73]'):
    e('s_waitcnt lgkmcnt(0)')
    if 'td' in FL:
        e('s_lshl_b32 s31, s2, 2\ns_add_u32 s31, s31, s28\ns_cmp_lg_u32 s31, 0\ns_cbranch_scc1 k1_end')
        e('s_load_dwordx2 s[96:97], s[0:1], 88\ns_waitcnt lgkmcnt(0)\ns_and_b32 s97, s97, 0xffff\ns_mov_b32 s98, 256\ns_mov_b32 s99, 0x20000')
        e('s_sub_u32 s31, s92, s74\nv_mov_b32 v2, s74\nv_mov_b32 v3, s31')
        for i in range(2,9): e(f's_sub_u32 s31, s{74+2*i}, s{72+2*i}\nv_mov_b32 v{2+i}, s31')
        e('v_mov_b32 v1, 0\ns_mov_b64 exec, 1')
        for i in range(9): e(f'buffer_store_dword v{2+i}, v1, s[96:99], 0 offen offset:{4*i}')
        return
    e('s_lshl_b32 s31, s2, 2\ns_add_u32 s31, s31, s28\ns_lshl_b32 s31, s31, 6\ns_add_u32 s31, s31, 0x4000000')
    e(f's_add_u32 s96, s72, s31\ns_addc_u32 s97, s73, 0\ns_and_b32 s97, s97, 0xffff\ns_mov_b32 s98, 64\ns_mov_b32 s99, 0x20000')
    for i in range(10): e(f'v_mov_b32 v{2+i}, s{74+2*i}')
    e('v_mov_b32 v1, 0\ns_mov_b64 exec, 1')
    for i in range(10): e(f'buffer_store_dword v{2+i}, v1, s[96:99], 0 offen offset:{4*i}')
def gen_k1(dbg=False):
    FL.clear(); FL.update((dbg or '').split('+'))
    e=Em(); slow=[]
    e('k1_kernel:')
    for x in ts(0,dbg,True)+ts(1,dbg): e(x)
    setup(e)
    for x in ts(3,0,grp=1): e(x)
    for buf in (0,1):
        for g in chunk_dma(buf): e('\n'.join(g))
        if buf==0:
            for x in ts(4,0,grp=1): e(x)
    e(f'''s_lshl_b32 s31, {shh}, 13
    s_lshl_b32 s51, {sqh}, 12
    s_add_u32 s31, s31, s51
    s_add_u32 {s_dm}, s31, {KM1-8192}
    s_mov_b32 {s_kso}, s51
    s_mov_b32 {s_vso}, s51''')
    for g in stage_dma(k_only=True): e('\n'.join(g))
    e(f'''s_add_u32 {s_kso}, {s_kso}, 8192
    s_add_u32 {s_dm}, {s_hq}, {slot(0)}''')
    for g in stage_dma(): e('\n'.join(g))
    e('\n'.join(stage_adv()))
    t0,t1=vT[0],vT[1]
    e(f'''s_and_b32 s31, s6, 3
    s_mul_i32 s31, s31, 49152
    s_lshl_b32 s51, {sw}, 14
    s_add_u32 s31, s31, s51
    v_lshlrev_b32 v{t0}, 7, v0
    buffer_load_dword v{vWarm[0]}, v{t0}, {sX}, s31 offen
    s_add_u32 s31, s31, 8192
    buffer_load_dword v{vWarm[1]}, v{t0}, {sX}, s31 offen
    v_lshrrev_b32 v{t1}, 2, v0
    v_and_b32 v{t0}, 3, v0
    v_lshlrev_b32 v{t0}, 7, v{t0}
    v_lshl_add_u32 v{t0}, v{t1}, 13, v{t0}
    s_lshl_b32 s31, s5, 19
    s_lshl_b32 s51, {sw}, 17
    s_add_u32 s31, s31, s51
    s_lshl_b32 s51, s6, 9
    s_add_u32 s31, s31, s51
    buffer_load_dword v{vWarm[2]}, v{t0}, {sW}, s31 offen''')
    for x in ts(5,0,grp=1): e(x)
    read_addrs(e)
    for r in range(64,256): e(f'v_mov_b32 v{r}, 0')
    e(f'''s_mov_b32 {sT[0]}, 0xff800000
    s_mov_b32 {sT[1]}, 0xff800000
    s_mov_b32 {sT[2]}, 0xff800000
    s_mov_b32 {sF[0]}, 0xff800000
    s_mov_b32 {sF[1]}, 0xff800000
    s_mov_b32 {sF[2]}, 0xff800000
    s_mov_b32 {s_cnt}, 0''')
    for x in ts(6,0,grp=1): e(x)
    e(f's_waitcnt vmcnt({14+12+3})')
    for x in ts(7,0,grp=1): e(x)
    e('s_barrier')
    for x in ts(8,0,grp=1): e(x)
    for x in ts(2,dbg): e(x)
    for r in qreads(0,0,0): e(r)
    e('k1_qloop:')
    w0=['s_waitcnt vmcnt(15)',f's_cmp_eq_u32 {s_cnt}, 0','s_cbranch_scc1 k1_q0','s_waitcnt vmcnt(0)','k1_q0:']
    body=qchunk(0,chunk_dma(0),w0)+qchunk(1,chunk_dma(1),['s_waitcnt vmcnt(0)'])
    check(body+body,'qloop')
    e('\n'.join(body))
    e(f'''s_add_u32 {s_cnt}, {s_cnt}, 1
    s_cmp_lt_u32 {s_cnt}, 3
    s_cbranch_scc1 k1_qloop''')
    for x in ts(3,dbg): e(x)
    zero=list(range(192))
    d6=stage_dma()+[stage_adv()]
    d7=stage_dma()+[stage_adv()]+stage_dma()+[stage_adv()]
    tail=qchunk(0,d6,['s_waitcnt vmcnt(0)'],zero)+qchunk(1,d7,[],zero,last=True)
    assert not zero
    post=ts(4,dbg)
    post+=[kread(kk) for kk in range(8)]
    post+=[f's_lshl_b32 s31, {shh}, 13', f's_add_u32 s31, s31, {slot(0)+8192-KM1}']
    post+=['s_nop 7']
    for kk in range(8): post.append(f'v_add_u32 v{vKr[kk]}, s31, v{vKr[kk]}')
    post+=[f's_mov_b32 {s_c}, {f2u(CSCALE):#x}', f's_mov_b32 s51, {f2u(CSCALE):#x}']
    for nt in range(3):
        for mt in range(4):
            src=QB+(nt*4+mt)*16; dst=QB+nt*32+mt*8
            for i in range(8): post.append(f'v_mul_f32 v{src+2*i}, {s_c}, v{src+2*i}'); post.append(f'v_mul_f32 v{src+2*i+1}, {s_c}, v{src+2*i+1}')
            for i in range(8): post.append(f'v_cvt_pk_bf16_f32 v{dst+i}, v{src+2*i}, v{src+2*i+1}')
    for r in range(NB,NB+48): post.append(f'v_mov_b32 v{r}, 0')
    for r in vL: post.append(f'v_mov_b32 v{r}, 0')
    post+=[f's_mov_b32 {s_rs}, {slot(1)}', f's_mov_b32 {s_delta}, {(slot(1)-slot(0))&0xffffffff:#x}', 's_waitcnt lgkmcnt(0)']
    post+=ts(5,dbg)
    post+=qk(0)
    if dbg=='q':
        e('\n'.join(tail+post[:-8]))
        for nt in range(3):
            for kk in range(8):
                e(f's_mov_b32 {s_tmp}, {nt*262144+kk*1024}')
                e(f'buffer_store_dwordx4 {Qf(nt,kk)}, v{vO16}, {sO}, {s_tmp} offen')
        e('s_waitcnt vmcnt(0)\nk1_end:\ns_endpgm')
        return e.text()
    if dbg=='s':
        e('\n'.join(tail+post))
        e('s_nop 15')
        for i in range(4):
            e(f's_mov_b32 {s_tmp}, {i*1024}')
            e(f'buffer_store_dwordx4 v[{S(0)+4*i}:{S(0)+4*i+3}], v{vO16}, {sO}, {s_tmp} offen')
        for i in range(8):
            e(f's_mov_b32 {s_tmp}, {(4+i)*1024}')
            e(f'buffer_store_dwordx4 a[{KF+4*i}:{KF+4*i+3}], v{vO16}, {sO}, {s_tmp} offen')
        e('s_waitcnt vmcnt(0)\nk1_end:\ns_endpgm')
        return e.text()
    G={}
    p0=period('B',0,None,1,G,0,'p0'); p0=(p0[0],['s_nop 7']+p0[1])
    p1=period('C',1,0,2,G,16,'p1')
    pro=emit_periods([p0,p1],G,0)
    e('\n'.join(tail+post+pro))
    G={}
    pA=period('A',2,1,0,G,0,'a'); pB=period('B',0,2,1,G,16,'b'); pC=period('C',1,0,2,G,32,'c')
    for k in [k for k in G if k>=48]:
        G[k-48]=G.pop(k)+G.get(k-48,[])
    body=emit_periods([pA,pB,pC],G,0)
    check(tail+post+pro+body+body,'attn')
    e(f's_mov_b32 {s_cnt}, 0')
    e('k1_aloop:')
    if 'nodma' in FL: body=[x for x in body if ' lds' not in x]
    if 'nomfma' in FL: body=[x for x in body if not (x.startswith('v_mfma') or x.startswith('v_exp') or x.startswith('v_max') or x.startswith('v_add_f32') or x.startswith('v_cvt') or x.startswith('s_cbranch_vccnz') or x.startswith('v_cmp') or x.startswith('ds_read'))]
    if 'nosm' in FL: body=[x for x in body if not (x.startswith('v_exp') or x.startswith('v_max') or x.startswith('v_add_f32') or x.startswith('v_cvt') or x.startswith('s_cbranch_vccnz') or x.startswith('v_cmp'))]
    for fl,pre in (('noadd',('v_add_f32',)),('nomax',('v_max','v_cmp','s_cbranch_vccnz')),('nobr',('s_cbranch_vccnz',)),('noexp',('v_exp',)),('nobar',('s_barrier',)),('nods',('ds_read',)),('nocvt',('v_cvt',)),('nosalu',('s_add','s_cmp','s_csel','s_sub','s_mov_b32 m0','s_nop'))):
        if fl in FL: body=[x for x in body if not x.startswith(pre)]
    e('\n'.join(body))
    e(f'''s_add_u32 {s_cnt}, {s_cnt}, 1
    s_cmp_lt_u32 {s_cnt}, 15
    s_cbranch_scc1 k1_aloop''')
    for x in ts(6,dbg): e(x)
    G={}
    for k,ops in softmax_ops(1,'x').items():
        if k>=16: G[k-16]=list(ops)
    pE=period('E',2,1,None,G,0,'e')
    ep=emit_periods([pE],G,0)
    for k in (16,17,18,19): ep+=G.get(k,[])
    ep+=['s_nop 1']+pv(2)
    fin=[]
    t0,t1=vT[0],vT[1]
    for nt in range(3):
        fin+=[f'v_mov_b32 v{t0}, v{vL[nt]}','s_nop 1',f'v_permlane32_swap_b32 v{t0}, v{vL[nt]}','s_nop 1',
              f'v_add_f32 v{t0}, v{t0}, v{vL[nt]}',f'v_rcp_f32 v{vL[nt]}, v{t0}']
    fin+=['s_nop 7']
    k=0
    for nt in range(3):
        for mt in range(4):
            for j1 in (0,1):
                tb=QB+(k%6)*12; k+=1
                a=Oacc(nt,mt)+8*j1
                for i in range(8): fin.append(f'v_accvgpr_read_b32 v{tb+i}, a{a+i}')
                for i in range(8): fin.append(f'v_mul_f32 v{tb+i}, v{tb+i}, v{vL[nt]}')
                for i in range(4): fin.append(f'v_cvt_pk_bf16_f32 v{tb+8+i}, v{tb+2*i}, v{tb+2*i+1}')
                fin.append(f's_mov_b32 {s_tmp}, {nt*262144+(2*mt+j1)*1024}')
                fin.append(f'buffer_store_dwordx4 v[{tb+8}:{tb+11}], v{vO16}, {sO}, {s_tmp} offen')
    check(body+ep+fin,'epi')
    e('\n'.join(ep+ts(7,dbg)+fin+ts(8,dbg)))
    if 't' in FL:
        e('s_waitcnt vmcnt(0)')
        for x in ts(9,dbg,True): e(x)
        ts_dump(e)
    e('k1_end:\ns_endpgm')
    for nt,site in ((0,'p0'),(1,'p1'),(2,'a'),(0,'b'),(1,'c'),(2,'e')): slow_path(e,nt,site)
    return e.text()
```

```python
from lib import *
K2_LAUNCH='grid=(256,1,1) block=(256,1,1) lds=131072'
K2_VG=512; K2_ACC=256
import os
P=int(os.environ.get('K2P','12')); R=16
NTW=' nt' if os.environ.get('K2NTW') else ''
NTO=' nt' if os.environ.get('K2NTO') else ''
ACC=64
AF=192
vO=[2,3,4]; vW=[5,6]; vA=[7,8]; vRd=9; vWr=10; vSt=11
sO='s[8:11]'; sW='s[12:15]'; sD='s[16:19]'
sw='s20'; s_o='s21'; s_w='s22'; s_lb='s23'; s_cnt='s24'
def acc(mt,nt): return ACC+(mt*3+nt)*16
def group(g):
    sl=g%R
    r=[]
    for nt in range(3):
        b=sl*12+nt*4
        r.append([f'buffer_load_dwordx4 a[{b}:{b+3}], v{vO[nt]}, {sO}, {s_o} offen{NTO}'])
    r.append([f's_add_u32 m0, {s_lb}, {sl*2048}',f's_add_u32 {s_o}, {s_o}, 1024',f'buffer_load_dwordx4 v{vW[0]}, {sW}, {s_w} offen{NTW} lds'])
    r.append([f'buffer_load_dwordx4 v{vW[1]}, {sW}, {s_w} offen offset:1024{NTW} lds',f's_add_u32 {s_w}, {s_w}, 16384'])
    return r
def areads(s):
    sl=s%R; fb=s&1
    return [f'ds_read_b64_tr_b16 a[{AF+fb*8+mt*4+rd*2}:{AF+fb*8+mt*4+rd*2+1}], v{vA[mt]} offset:{sl*2048+rd*512}' for mt in range(2) for rd in range(2)]
def step(s, last_group, first=False):
    sl=s%R; fb=s&1
    mf=[]
    for mt in range(2):
        for nt in range(3):
            a=acc(mt,nt); c=f'v[{a}:{a+15}]' if not first else '0'
            mf.append(f'v_mfma_f32_32x32x16_bf16 v[{a}:{a+15}], a[{AF+fb*8+mt*4}:{AF+fb*8+mt*4+3}], a[{sl*12+nt*4}:{sl*12+nt*4+3}], {c}')
    gaps={g:[] for g in range(6)}
    if s+1<=last_group:
        issued=min(s+P-1,last_group)
        n=(issued-(s+1))*5
        gaps[0].append(f's_waitcnt vmcnt({n})')
        rd=areads(s+1)
        gaps[0]+=rd[:2]; gaps[1]+=rd[2:]
    if s+P<=last_group:
        g=group(s+P)
        for i,k in enumerate((1,2,3,4,5)): gaps[k]+=g[i]
    return weave(mf,gaps,['s_waitcnt lgkmcnt(0)'])
def gen_k2():
    e=Em()
    e('k2_kernel:')
    TD=os.environ.get('K2TD')
    if TD: e('s_memrealtime s[74:75]\ns_memtime s[76:77]')
    e(f'''s_cmp_ge_u32 s2, 256
    s_cbranch_scc1 k2_end
    s_load_dwordx2 s[28:29], s[0:1], 32
    s_load_dwordx2 s[30:31], s[0:1], 72
    s_load_dwordx2 s[32:33], s[0:1], 80
    s_load_dwordx2 s[34:35], s[0:1], 96
    v_lshrrev_b32 v1, 6, v0
    v_and_b32 v0, 63, v0
    s_and_b32 s3, s2, 1
    v_readfirstlane_b32 {sw}, v1
    s_lshr_b32 s4, s2, 3
    s_bfe_u32 s5, s2, 0x20001
    s_lshl_b32 s5, s5, 2
    s_and_b32 s6, s4, 3
    s_add_u32 s5, s5, s6
    s_lshr_b32 s6, s4, 2''')
    e(f'''v_lshlrev_b32 v{vO[0]}, 4, v0
    v_add_u32 v{vO[1]}, 0x40000, v{vO[0]}
    v_add_u32 v{vO[2]}, 0x80000, v{vO[0]}
    v_lshrrev_b32 v12, 3, v0
    v_and_b32 v13, 7, v0
    v_bfe_u32 v14, v0, 4, 1
    v_lshlrev_b32 v14, 2, v14
    v_xor_b32 v13, v13, v14
    v_lshlrev_b32 v13, 4, v13
    v_lshl_add_u32 v{vW[0]}, v12, 10, v13
    v_add_u32 v{vW[1]}, {8192-1024}, v{vW[0]}
    s_waitcnt lgkmcnt(0)
    s_cmp_eq_u32 s3, 0
    s_cselect_b32 s12, s28, s30
    s_cselect_b32 s13, s29, s31
    s_lshl_b32 s7, s6, 7
    s_add_u32 s12, s12, s7
    s_addc_u32 s13, s13, 0
    s_and_b32 s13, s13, 0xffff
    s_mov_b32 s14, 4194304
    s_mov_b32 s15, 0x20000
    s_mul_i32 s7, s3, 48
    s_mul_i32 s25, s5, 3
    s_add_u32 s7, s7, s25
    s_lshl_b32 s7, s7, 2
    s_add_u32 s7, s7, {sw}
    s_lshl_b32 s7, s7, 16
    s_add_u32 s8, s34, s7
    s_addc_u32 s9, s35, 0
    s_and_b32 s9, s9, 0xffff
    s_mov_b32 s10, {2*262144+65536}
    s_mov_b32 s11, 0x20000
    s_mov_b32 {s_o}, 0
    s_lshl_b32 {s_w}, {sw}, 20
    s_lshl_b32 {s_lb}, {sw}, 15''')
    for g in range(P):
        for x in group(g): e('\n'.join(x))
    e(f'''s_mul_i32 s7, s5, 196608
    s_lshl_b32 s25, s3, 10
    s_add_u32 s7, s7, s25
    s_lshl_b32 s25, s6, 7
    s_add_u32 s7, s7, s25
    s_add_u32 s16, s32, s7
    s_addc_u32 s17, s33, 0
    s_and_b32 s17, s17, 0xffff
    s_mov_b32 s18, 196608
    s_mov_b32 s19, 0x20000
    v_and_b32 v12, 31, v0
    v_lshrrev_b32 v13, 5, v0
    v_lshlrev_b32 v14, 4, v13
    v_lshl_add_u32 v{vSt}, v12, 11, v14
    s_lshl_b32 s7, {sw}, 5
    v_add_u32 v{vSt}, s7, v{vSt}''')
    e(f'''v_bfe_u32 v12, v0, 2, 2
    v_lshl_add_u32 v14, v13, 3, v12
    v_lshlrev_b32 v14, 7, v14
    v_bfe_u32 v15, v0, 3, 1
    v_lshl_or_b32 v14, v15, 6, v14
    v_bfe_u32 v15, v0, 4, 1
    v_lshl_or_b32 v14, v15, 5, v14
    v_and_b32 v15, 1, v0
    v_lshl_or_b32 v14, v15, 4, v14
    v_bfe_u32 v15, v0, 1, 1
    v_lshl_or_b32 v14, v15, 3, v14
    v_add_u32 v{vA[0]}, {s_lb}, v14
    v_xor_b32 v{vA[1]}, 64, v{vA[0]}
    v_lshlrev_b32 v12, 4, v0
    v_add_u32 v{vWr}, {s_lb}, v12
    s_mul_i32 s7, {sw}, 6144
    v_add_u32 v{vRd}, s7, v12''')
    for r in range(ACC,ACC+96): e(f'v_mov_b32 v{r}, 0')
    if TD: e('s_memtime s[78:79]')
    e(f's_waitcnt vmcnt({(P-1)*5})')
    if TD: e('s_memtime s[80:81]')
    for r in areads(0): e(r)
    e(f's_mov_b32 {s_cnt}, 0')
    e('k2_loop:')
    body=[]
    for s in range(16): body+=step(s,1000)
    check(body+body,'k2loop')
    e('\n'.join(body))
    e(f'''s_add_u32 {s_cnt}, {s_cnt}, 1
    s_cmp_lt_u32 {s_cnt}, 3
    s_cbranch_scc1 k2_loop''')
    tail=[]
    for s in range(48,64): tail+=step(s,63)
    fin=['s_nop 7','s_nop 7']
    for mt in range(2):
        for half in range(2):
            for nt in range(3):
                for q in range(2):
                    a=acc(mt,nt)+8*half+4*q
                    fin.append(f'ds_write_b128 v{vWr}, v[{a}:{a+3}] offset:{(((mt*2+half)*3+nt)*2+q)*1024}')
    fin+=['s_waitcnt lgkmcnt(0)','s_barrier']
    T=64
    for src in range(4):
        for nt in range(3):
            for q in range(2):
                b=T+((src*3+nt)*2+q)*4
                if src<2: fin.append(f'ds_read_b128 v[{b}:{b+3}], v{vRd} offset:{src*32768+nt*2048+q*1024}')
                else: fin.append(f'ds_read_b128 v[{b}:{b+3}], v12 offset:{(src-2)*32768+nt*2048+q*1024}')
        if src==1: fin.append(f'v_add_u32 v12, 0x10000, v{vRd}')
    for nt in range(3):
        fin.append(f's_waitcnt lgkmcnt({min(15,0)})') if nt==0 else None
        for i in range(8):
            b=lambda src: T+(src*3+nt)*8+i
            fin.append(f'v_add_f32 v{b(0)}, v{b(0)}, v{b(1)}')
            fin.append(f'v_add_f32 v{b(2)}, v{b(2)}, v{b(3)}')
        for i in range(8):
            b=lambda src: T+(src*3+nt)*8+i
            fin.append(f'v_add_f32 v{b(0)}, v{b(0)}, v{b(2)}')
        d=T+96+nt*4
        for i in range(4): fin.append(f'v_cvt_pk_bf16_f32 v{d+i}, v{T+nt*8+2*i}, v{T+nt*8+2*i+1}')
        fin.append(f's_mov_b32 s7, {nt*65536}')
        fin.append(f'buffer_store_dwordx4 v[{d}:{d+3}], v{vSt}, {sD}, s7 offen')
    check(body+tail+fin,'k2tail')
    if TD:
        tail=['s_memtime s[82:83]']+tail; fin=['s_memtime s[84:85]']+fin+['s_waitcnt vmcnt(0)','s_memtime s[86:87]','s_memrealtime s[88:89]','s_waitcnt lgkmcnt(0)']
    e('\n'.join(tail+fin))
    if TD:
        e(f's_lshl_b32 s31, s2, 2\ns_add_u32 s31, s31, {sw}\ns_cmp_lg_u32 s31, 0\ns_cbranch_scc1 k2_end')
        e('s_load_dwordx2 s[96:97], s[0:1], 88\ns_waitcnt lgkmcnt(0)\ns_and_b32 s97, s97, 0xffff\ns_mov_b32 s98, 256\ns_mov_b32 s99, 0x20000')
        e('s_sub_u32 s31, s88, s74\nv_mov_b32 v2, s74\nv_mov_b32 v3, s31')
        for i in range(5): e(f's_sub_u32 s31, s{78+2*i}, s{76+2*i}\nv_mov_b32 v{4+i}, s31')
        e('v_mov_b32 v1, 0\ns_mov_b64 exec, 1')
        for i in range(7): e(f'buffer_store_dword v{2+i}, v1, s[96:99], 0 offen offset:{36+4*i}')
    e('k2_end:\ns_endpgm')
    return e.text()
```

```python
from lib import *
K2_LAUNCH='grid=(256,1,1) block=(256,1,1) lds=131072'
K2_VG=512; K2_ACC=256
import os
P=int(os.environ.get('K2P','12')); R=16
NTW=' nt' if os.environ.get('K2NTW') else ''
NTO=' nt' if os.environ.get('K2NTO') else ''
ACC=64
AF=192
vO=[2,3,4]; vW=[5,6]; vA=[7,8]; vRd=9; vWr=10; vSt=11
sO='s[8:11]'; sW='s[12:15]'; sD='s[16:19]'
sw='s20'; s_o='s21'; s_w='s22'; s_lb='s23'; s_cnt='s24'
def acc(mt,nt): return ACC+(mt*3+nt)*16
def group(g):
    sl=g%R
    r=[]
    for nt in range(3):
        b=sl*12+nt*4
        r.append([f'buffer_load_dwordx4 a[{b}:{b+3}], v{vO[nt]}, {sO}, {s_o} offen{NTO}'])
    r.append([f's_add_u32 m0, {s_lb}, {sl*2048}',f's_add_u32 {s_o}, {s_o}, 1024',f'buffer_load_dwordx4 v{vW[0]}, {sW}, {s_w} offen{NTW} lds'])
    r.append([f'buffer_load_dwordx4 v{vW[1]}, {sW}, {s_w} offen offset:1024{NTW} lds',f's_add_u32 {s_w}, {s_w}, 16384'])
    return r
def areads(s):
    sl=s%R; fb=s&1
    return [f'ds_read_b64_tr_b16 a[{AF+fb*8+mt*4+rd*2}:{AF+fb*8+mt*4+rd*2+1}], v{vA[mt]} offset:{sl*2048+rd*512}' for mt in range(2) for rd in range(2)]
def step(s, last_group, first=False):
    sl=s%R; fb=s&1
    mf=[]
    for mt in range(2):
        for nt in range(3):
            a=acc(mt,nt); c=f'v[{a}:{a+15}]' if not first else '0'
            mf.append(f'v_mfma_f32_32x32x16_bf16 v[{a}:{a+15}], a[{AF+fb*8+mt*4}:{AF+fb*8+mt*4+3}], a[{sl*12+nt*4}:{sl*12+nt*4+3}], {c}')
    gaps={g:[] for g in range(6)}
    if s+1<=last_group:
        issued=min(s+P-1,last_group)
        n=(issued-(s+1))*5
        gaps[0].append(f's_waitcnt vmcnt({n})')
        rd=areads(s+1)
        gaps[0]+=rd[:2]; gaps[1]+=rd[2:]
    if s+P<=last_group:
        g=group(s+P)
        for i,k in enumerate((1,2,3,4,5)): gaps[k]+=g[i]
    return weave(mf,gaps,['s_waitcnt lgkmcnt(0)'])
def gen_k2():
    e=Em()
    e('k2_kernel:')
    TD=os.environ.get('K2TD')
    if TD: e('s_memrealtime s[74:75]\ns_memtime s[76:77]')
    e(f'''s_cmp_ge_u32 s2, 256
    s_cbranch_scc1 k2_end
    s_load_dwordx2 s[28:29], s[0:1], 32
    s_load_dwordx2 s[30:31], s[0:1], 72
    s_load_dwordx2 s[32:33], s[0:1], 80
    s_load_dwordx2 s[34:35], s[0:1], 96
    v_lshrrev_b32 v1, 6, v0
    v_and_b32 v0, 63, v0
    s_and_b32 s3, s2, 1
    v_readfirstlane_b32 {sw}, v1
    s_lshr_b32 s4, s2, 3
    s_bfe_u32 s5, s2, 0x20001
    s_lshl_b32 s5, s5, 2
    s_and_b32 s6, s4, 3
    s_add_u32 s5, s5, s6
    s_lshr_b32 s6, s4, 2''')
    e(f'''v_lshlrev_b32 v{vO[0]}, 4, v0
    v_add_u32 v{vO[1]}, 0x40000, v{vO[0]}
    v_add_u32 v{vO[2]}, 0x80000, v{vO[0]}
    v_lshrrev_b32 v12, 3, v0
    v_and_b32 v13, 7, v0
    v_bfe_u32 v14, v0, 4, 1
    v_lshlrev_b32 v14, 2, v14
    v_xor_b32 v13, v13, v14
    v_lshlrev_b32 v13, 4, v13
    v_lshl_add_u32 v{vW[0]}, v12, 10, v13
    v_add_u32 v{vW[1]}, {8192-1024}, v{vW[0]}
    s_waitcnt lgkmcnt(0)
    s_cmp_eq_u32 s3, 0
    s_cselect_b32 s12, s28, s30
    s_cselect_b32 s13, s29, s31
    s_lshl_b32 s7, s6, 7
    s_add_u32 s12, s12, s7
    s_addc_u32 s13, s13, 0
    s_and_b32 s13, s13, 0xffff
    s_mov_b32 s14, 4194304
    s_mov_b32 s15, 0x20000
    s_mul_i32 s7, s3, 48
    s_mul_i32 s25, s5, 3
    s_add_u32 s7, s7, s25
    s_lshl_b32 s7, s7, 2
    s_add_u32 s7, s7, {sw}
    s_lshl_b32 s7, s7, 16
    s_add_u32 s8, s34, s7
    s_addc_u32 s9, s35, 0
    s_and_b32 s9, s9, 0xffff
    s_mov_b32 s10, {2*262144+65536}
    s_mov_b32 s11, 0x20000
    s_mov_b32 {s_o}, 0
    s_lshl_b32 {s_w}, {sw}, 20
    s_lshl_b32 {s_lb}, {sw}, 15''')
    for g in range(P):
        for x in group(g): e('\n'.join(x))
    e(f'''s_mul_i32 s7, s5, 196608
    s_lshl_b32 s25, s3, 10
    s_add_u32 s7, s7, s25
    s_lshl_b32 s25, s6, 7
    s_add_u32 s7, s7, s25
    s_add_u32 s16, s32, s7
    s_addc_u32 s17, s33, 0
    s_and_b32 s17, s17, 0xffff
    s_mov_b32 s18, 196608
    s_mov_b32 s19, 0x20000
    v_and_b32 v12, 31, v0
    v_lshrrev_b32 v13, 5, v0
    v_lshlrev_b32 v14, 4, v13
    v_lshl_add_u32 v{vSt}, v12, 11, v14
    s_lshl_b32 s7, {sw}, 5
    v_add_u32 v{vSt}, s7, v{vSt}''')
    e(f'''v_bfe_u32 v12, v0, 2, 2
    v_lshl_add_u32 v14, v13, 3, v12
    v_lshlrev_b32 v14, 7, v14
    v_bfe_u32 v15, v0, 3, 1
    v_lshl_or_b32 v14, v15, 6, v14
    v_bfe_u32 v15, v0, 4, 1
    v_lshl_or_b32 v14, v15, 5, v14
    v_and_b32 v15, 1, v0
    v_lshl_or_b32 v14, v15, 4, v14
    v_bfe_u32 v15, v0, 1, 1
    v_lshl_or_b32 v14, v15, 3, v14
    v_add_u32 v{vA[0]}, {s_lb}, v14
    v_xor_b32 v{vA[1]}, 64, v{vA[0]}
    v_lshlrev_b32 v12, 4, v0
    v_add_u32 v{vWr}, {s_lb}, v12
    s_mul_i32 s7, {sw}, 6144
    v_add_u32 v{vRd}, s7, v12''')
    for r in range(ACC,ACC+96): e(f'v_mov_b32 v{r}, 0')
    if TD: e('s_memtime s[78:79]')
    e(f's_waitcnt vmcnt({(P-1)*5})')
    if TD: e('s_memtime s[80:81]')
    for r in areads(0): e(r)
    e(f's_mov_b32 {s_cnt}, 0')
    e('k2_loop:')
    body=[]
    for s in range(16): body+=step(s,1000)
    check(body+body,'k2loop')
    e('\n'.join(body))
    e(f'''s_add_u32 {s_cnt}, {s_cnt}, 1
    s_cmp_lt_u32 {s_cnt}, 3
    s_cbranch_scc1 k2_loop''')
    tail=[]
    for s in range(48,64): tail+=step(s,63)
    fin=['s_nop 7','s_nop 7']
    for mt in range(2):
        for half in range(2):
            for nt in range(3):
                for q in range(2):
                    a=acc(mt,nt)+8*half+4*q
                    fin.append(f'ds_write_b128 v{vWr}, v[{a}:{a+3}] offset:{(((mt*2+half)*3+nt)*2+q)*1024}')
    fin+=['s_waitcnt lgkmcnt(0)','s_barrier']
    T=64
    for src in range(4):
        for nt in range(3):
            for q in range(2):
                b=T+((src*3+nt)*2+q)*4
                if src<2: fin.append(f'ds_read_b128 v[{b}:{b+3}], v{vRd} offset:{src*32768+nt*2048+q*1024}')
                else: fin.append(f'ds_read_b128 v[{b}:{b+3}], v12 offset:{(src-2)*32768+nt*2048+q*1024}')
        if src==1: fin.append(f'v_add_u32 v12, 0x10000, v{vRd}')
    for nt in range(3):
        fin.append(f's_waitcnt lgkmcnt({min(15,0)})') if nt==0 else None
        for i in range(8):
            b=lambda src: T+(src*3+nt)*8+i
            fin.append(f'v_add_f32 v{b(0)}, v{b(0)}, v{b(1)}')
            fin.append(f'v_add_f32 v{b(2)}, v{b(2)}, v{b(3)}')
        for i in range(8):
            b=lambda src: T+(src*3+nt)*8+i
            fin.append(f'v_add_f32 v{b(0)}, v{b(0)}, v{b(2)}')
        d=T+96+nt*4
        for i in range(4): fin.append(f'v_cvt_pk_bf16_f32 v{d+i}, v{T+nt*8+2*i}, v{T+nt*8+2*i+1}')
        fin.append(f's_mov_b32 s7, {nt*65536}')
        fin.append(f'buffer_store_dwordx4 v[{d}:{d+3}], v{vSt}, {sD}, s7 offen')
    check(body+tail+fin,'k2tail')
    if TD:
        tail=['s_memtime s[82:83]']+tail; fin=['s_memtime s[84:85]']+fin+['s_waitcnt vmcnt(0)','s_memtime s[86:87]','s_memrealtime s[88:89]','s_waitcnt lgkmcnt(0)']
    e('\n'.join(tail+fin))
    if TD:
        e(f's_lshl_b32 s31, s2, 2\ns_add_u32 s31, s31, {sw}\ns_cmp_lg_u32 s31, 0\ns_cbranch_scc1 k2_end')
        e('s_load_dwordx2 s[96:97], s[0:1], 88\ns_waitcnt lgkmcnt(0)\ns_and_b32 s97, s97, 0xffff\ns_mov_b32 s98, 256\ns_mov_b32 s99, 0x20000')
        e('s_sub_u32 s31, s88, s74\nv_mov_b32 v2, s74\nv_mov_b32 v3, s31')
        for i in range(5): e(f's_sub_u32 s31, s{78+2*i}, s{76+2*i}\nv_mov_b32 v{4+i}, s31')
        e('v_mov_b32 v1, 0\ns_mov_b64 exec, 1')
        for i in range(7): e(f'buffer_store_dword v{2+i}, v1, s[96:99], 0 offen offset:{36+4*i}')
        e('s_add_u32 s34, s34, 0x4000000\ns_addc_u32 s35, s35, 0\ns_load_dwordx16 s[40:55], s[34:35], 0\ns_waitcnt lgkmcnt(0)')
        e('s_sub_u32 s31, s49, s40\nv_mov_b32 v2, s40\nv_mov_b32 v3, s31')
        for i in range(2,9): e(f's_sub_u32 s31, s{40+i}, s{39+i}\nv_mov_b32 v{2+i}, s31')
        for i in range(9): e(f'buffer_store_dword v{2+i}, v1, s[96:99], 0 offen offset:{4*i}')
    e('k2_end:\ns_endpgm')
    return e.text()
```

```python
from lib import *
K2_LAUNCH='grid=(256,1,1) block=(256,1,1) lds=131072'
K2_VG=512; K2_ACC=256
import os
P=int(os.environ.get('K2P','12')); R=16
NTW=' nt' if os.environ.get('K2NTW') else ''
NTO=' nt' if os.environ.get('K2NTO') else ''
ACC=64
AF=192
vO=[2,3,4]; vW=[5,6]; vA=[7,8]; vRd=9; vWr=10; vSt=11
sO='s[8:11]'; sW='s[12:15]'; sD='s[16:19]'
sw='s20'; s_o='s21'; s_w='s22'; s_lb='s23'; s_cnt='s24'
def acc(mt,nt): return ACC+(mt*3+nt)*16
def group(g):
    sl=g%R
    r=[]
    for nt in range(3):
        b=sl*12+nt*4
        r.append([f'buffer_load_dwordx4 a[{b}:{b+3}], v{vO[nt]}, {sO}, {s_o} offen{NTO}'])
    r.append([f's_add_u32 m0, {s_lb}, {sl*2048}',f's_add_u32 {s_o}, {s_o}, 1024',f'buffer_load_dwordx4 v{vW[0]}, {sW}, {s_w} offen{NTW} lds'])
    r.append([f'buffer_load_dwordx4 v{vW[1]}, {sW}, {s_w} offen offset:1024{NTW} lds',f's_add_u32 {s_w}, {s_w}, 16384'])
    return r
def areads(s):
    sl=s%R; fb=s&1
    return [f'ds_read_b64_tr_b16 a[{AF+fb*8+mt*4+rd*2}:{AF+fb*8+mt*4+rd*2+1}], v{vA[mt]} offset:{sl*2048+rd*512}' for mt in range(2) for rd in range(2)]
def step(s, last_group, first=False):
    sl=s%R; fb=s&1
    mf=[]
    for mt in range(2):
        for nt in range(3):
            a=acc(mt,nt); c=f'v[{a}:{a+15}]' if not first else '0'
            mf.append(f'v_mfma_f32_32x32x16_bf16 v[{a}:{a+15}], a[{AF+fb*8+mt*4}:{AF+fb*8+mt*4+3}], a[{sl*12+nt*4}:{sl*12+nt*4+3}], {c}')
    gaps={g:[] for g in range(6)}
    if s+1<=last_group:
        issued=min(s+P-1,last_group)
        n=(issued-(s+1))*5
        gaps[0].append(f's_waitcnt vmcnt({n})')
        rd=areads(s+1)
        gaps[0]+=rd[:2]; gaps[1]+=rd[2:]
    if s+P<=last_group:
        g=group(s+P)
        for i,k in enumerate((1,2,3,4,5)): gaps[k]+=g[i]
    return weave(mf,gaps,['s_waitcnt lgkmcnt(0)'])
def gen_k2():
    e=Em()
    e('k2_kernel:')
    TD=os.environ.get('K2TD')
    if TD: e('s_memrealtime s[74:75]\ns_memtime s[76:77]')
    e(f'''s_cmp_ge_u32 s2, 256
    s_cbranch_scc1 k2_end
    s_load_dwordx2 s[28:29], s[0:1], 32
    s_load_dwordx2 s[30:31], s[0:1], 72
    s_load_dwordx2 s[32:33], s[0:1], 80
    s_load_dwordx2 s[34:35], s[0:1], 96
    v_lshrrev_b32 v1, 6, v0
    v_and_b32 v0, 63, v0
    s_and_b32 s3, s2, 1
    v_readfirstlane_b32 {sw}, v1
    s_lshr_b32 s4, s2, 3
    s_bfe_u32 s5, s2, 0x20001
    s_lshl_b32 s5, s5, 2
    s_and_b32 s6, s4, 3
    s_add_u32 s5, s5, s6
    s_lshr_b32 s6, s4, 2''')
    e(f'''v_lshlrev_b32 v{vO[0]}, 4, v0
    v_add_u32 v{vO[1]}, 0x40000, v{vO[0]}
    v_add_u32 v{vO[2]}, 0x80000, v{vO[0]}
    v_lshrrev_b32 v12, 3, v0
    v_and_b32 v13, 7, v0
    v_bfe_u32 v14, v0, 4, 1
    v_lshlrev_b32 v14, 2, v14
    v_xor_b32 v13, v13, v14
    v_lshlrev_b32 v13, 4, v13
    v_lshl_add_u32 v{vW[0]}, v12, 10, v13
    v_add_u32 v{vW[1]}, {8192-1024}, v{vW[0]}
    s_waitcnt lgkmcnt(0)
    s_cmp_eq_u32 s3, 0
    s_cselect_b32 s12, s28, s30
    s_cselect_b32 s13, s29, s31
    s_lshl_b32 s7, s6, 7
    s_add_u32 s12, s12, s7
    s_addc_u32 s13, s13, 0
    s_and_b32 s13, s13, 0xffff
    s_mov_b32 s14, 4194304
    s_mov_b32 s15, 0x20000
    s_mul_i32 s7, s3, 48
    s_mul_i32 s25, s5, 3
    s_add_u32 s7, s7, s25
    s_lshl_b32 s7, s7, 2
    s_add_u32 s7, s7, {sw}
    s_lshl_b32 s7, s7, 16
    s_add_u32 s8, s34, s7
    s_addc_u32 s9, s35, 0
    s_and_b32 s9, s9, 0xffff
    s_mov_b32 s10, {2*262144+65536}
    s_mov_b32 s11, 0x20000
    s_mov_b32 {s_o}, 0
    s_lshl_b32 {s_w}, {sw}, 20
    s_lshl_b32 {s_lb}, {sw}, 15''')
    for g in range(P):
        for x in group(g): e('\n'.join(x))
    e(f'''s_mul_i32 s7, s5, 196608
    s_lshl_b32 s25, s3, 10
    s_add_u32 s7, s7, s25
    s_lshl_b32 s25, s6, 7
    s_add_u32 s7, s7, s25
    s_add_u32 s16, s32, s7
    s_addc_u32 s17, s33, 0
    s_and_b32 s17, s17, 0xffff
    s_mov_b32 s18, 196608
    s_mov_b32 s19, 0x20000
    v_and_b32 v12, 31, v0
    v_lshrrev_b32 v13, 5, v0
    v_lshlrev_b32 v14, 4, v13
    v_lshl_add_u32 v{vSt}, v12, 11, v14
    s_lshl_b32 s7, {sw}, 5
    v_add_u32 v{vSt}, s7, v{vSt}''')
    e(f'''v_bfe_u32 v12, v0, 2, 2
    v_lshl_add_u32 v14, v13, 3, v12
    v_lshlrev_b32 v14, 7, v14
    v_bfe_u32 v15, v0, 3, 1
    v_lshl_or_b32 v14, v15, 6, v14
    v_bfe_u32 v15, v0, 4, 1
    v_lshl_or_b32 v14, v15, 5, v14
    v_and_b32 v15, 1, v0
    v_lshl_or_b32 v14, v15, 4, v14
    v_bfe_u32 v15, v0, 1, 1
    v_lshl_or_b32 v14, v15, 3, v14
    v_add_u32 v{vA[0]}, {s_lb}, v14
    v_xor_b32 v{vA[1]}, 64, v{vA[0]}
    v_lshlrev_b32 v12, 4, v0
    v_add_u32 v{vWr}, {s_lb}, v12
    s_mul_i32 s7, {sw}, 6144
    v_add_u32 v{vRd}, s7, v12''')
    for r in range(ACC,ACC+96): e(f'v_mov_b32 v{r}, 0')
    if TD: e('s_memtime s[78:79]')
    e(f's_waitcnt vmcnt({(P-1)*5})')
    if TD: e('s_memtime s[80:81]')
    for r in areads(0): e(r)
    e(f's_mov_b32 {s_cnt}, 0')
    e('k2_loop:')
    body=[]
    for s in range(16): body+=step(s,1000)
    check(body+body,'k2loop')
    e('\n'.join(body))
    e(f'''s_add_u32 {s_cnt}, {s_cnt}, 1
    s_cmp_lt_u32 {s_cnt}, 3
    s_cbranch_scc1 k2_loop''')
    tail=[]
    for s in range(48,64): tail+=step(s,63)
    fin=['s_nop 7','s_nop 7']
    for mt in range(2):
        for half in range(2):
            for nt in range(3):
                for q in range(2):
                    a=acc(mt,nt)+8*half+4*q
                    fin.append(f'ds_write_b128 v{vWr}, v[{a}:{a+3}] offset:{(((mt*2+half)*3+nt)*2+q)*1024}')
    fin+=['s_waitcnt lgkmcnt(0)','s_barrier']
    T=64
    for src in range(4):
        for nt in range(3):
            for q in range(2):
                b=T+((src*3+nt)*2+q)*4
                if src<2: fin.append(f'ds_read_b128 v[{b}:{b+3}], v{vRd} offset:{src*32768+nt*2048+q*1024}')
                else: fin.append(f'ds_read_b128 v[{b}:{b+3}], v12 offset:{(src-2)*32768+nt*2048+q*1024}')
        if src==1: fin.append(f'v_add_u32 v12, 0x10000, v{vRd}')
    for nt in range(3):
        fin.append(f's_waitcnt lgkmcnt({min(15,0)})') if nt==0 else None
        for i in range(8):
            b=lambda src: T+(src*3+nt)*8+i
            fin.append(f'v_add_f32 v{b(0)}, v{b(0)}, v{b(1)}')
            fin.append(f'v_add_f32 v{b(2)}, v{b(2)}, v{b(3)}')
        for i in range(8):
            b=lambda src: T+(src*3+nt)*8+i
            fin.append(f'v_add_f32 v{b(0)}, v{b(0)}, v{b(2)}')
        d=T+96+nt*4
        for i in range(4): fin.append(f'v_cvt_pk_bf16_f32 v{d+i}, v{T+nt*8+2*i}, v{T+nt*8+2*i+1}')
        fin.append(f's_mov_b32 s7, {nt*65536}')
        fin.append(f'buffer_store_dwordx4 v[{d}:{d+3}], v{vSt}, {sD}, s7 offen')
    check(body+tail+fin,'k2tail')
    if TD:
        tail=['s_memtime s[82:83]']+tail; fin=['s_memtime s[84:85]']+fin+['s_waitcnt vmcnt(0)','s_memtime s[86:87]','s_memrealtime s[88:89]','s_waitcnt lgkmcnt(0)']
    e('\n'.join(tail+fin))
    if TD:
        e(f's_lshl_b32 s31, s2, 2\ns_add_u32 s31, s31, {sw}\ns_cmp_lg_u32 s31, 0\ns_cbranch_scc1 k2_end')
        e('s_load_dwordx2 s[96:97], s[0:1], 88\ns_waitcnt lgkmcnt(0)\ns_and_b32 s97, s97, 0xffff\ns_mov_b32 s98, 256\ns_mov_b32 s99, 0x20000')
        e('s_sub_u32 s31, s88, s74\nv_mov_b32 v2, s74\nv_mov_b32 v3, s31')
        for i in range(5): e(f's_sub_u32 s31, s{78+2*i}, s{76+2*i}\nv_mov_b32 v{4+i}, s31')
        e('v_mov_b32 v1, 0\ns_mov_b64 exec, 1')
        for i in range(7): e(f'buffer_store_dword v{2+i}, v1, s[96:99], 0 offen offset:{36+4*i}')
        e('s_add_u32 s34, s34, 0x4000000\ns_addc_u32 s35, s35, 0\ns_load_dwordx16 s[40:55], s[34:35], 0\ns_waitcnt lgkmcnt(0)')
        e('s_sub_u32 s31, s49, s40\nv_mov_b32 v2, s40\nv_mov_b32 v3, s31')
        for i in range(2,9): e(f's_sub_u32 s31, s{40+i}, s{39+i}\nv_mov_b32 v{2+i}, s31')
        for i in range(9): e(f'buffer_store_dword v{2+i}, v1, s[96:99], 0 offen offset:{4*i}')
        e('s_add_u32 s96, s34, 0x100000\ns_addc_u32 s97, s35, 0\ns_and_b32 s97, s97, 0xffff\nv_mov_b32 v2, s74\nv_mov_b32 v3, s88')
        e('buffer_store_dword v2, v1, s[96:99], 0 offen\nbuffer_store_dword v3, v1, s[96:99], 0 offen offset:4')
    e('k2_end:\ns_endpgm')
    return e.text()

def gen_k3(mode):
    e=Em()
    e('k3_kernel:')
    e("""s_cmp_ge_u32 s2, 1
    s_cbranch_scc1 k3_end
    s_load_dwordx2 s[34:35], s[0:1], 96
    s_waitcnt lgkmcnt(0)
    s_add_u32 s34, s34, 0x4000000
    s_addc_u32 s35, s35, 0
    s_load_dwordx16 s[40:55], s[34:35], 0
    s_add_u32 s34, s34, 0x100000
    s_addc_u32 s35, s35, 0
    s_load_dwordx2 s[56:57], s[34:35], 0
    s_memrealtime s[60:61]
    s_waitcnt lgkmcnt(0)""")
    if mode=='0': e('s_mov_b32 s31, 0')
    if mode=='k1': e('s_sub_u32 s31, s49, s40')
    if mode=='k2s': e('s_sub_u32 s31, s56, s40')
    if mode=='k2e': e('s_sub_u32 s31, s57, s40')
    if mode.startswith('seg'):
        i=int(mode[3:]); e(f's_sub_u32 s31, s{40+i}, s{39+i}\ns_lshr_b32 s31, s31, 5')
    e("""s_min_u32 s31, s31, 20000
    s_lshl_b32 s31, s31, 3
    k3_loop:
    s_memrealtime s[62:63]
    s_waitcnt lgkmcnt(0)
    s_sub_u32 s30, s62, s60
    s_cmp_lt_u32 s30, s31
    s_cbranch_scc1 k3_loop
    k3_end:
    s_endpgm""")
    return e.text()
```

```python
import sys
sys.path.insert(0,'w')
from k1 import gen_k1
try:
    from k2 import gen_k2
except ImportError:
    gen_k2=None
hdr=open('concat_heads__mha_block_cached__mha_block_cached__near_ridge.s.ref').read().split('\n')
hdr=[l for l in hdr if l.startswith(';') and '@launch' not in l and 'Override' not in l and 'grid=ceil' not in l]
def kd(name,vg,acc,sg=102):
    return f'''.amdhsa_kernel {name}
  .amdhsa_next_free_vgpr {vg}
  .amdhsa_next_free_sgpr {sg}
  .amdhsa_accum_offset {acc}
  .amdhsa_group_segment_fixed_size 0
  .amdhsa_kernarg_size 104
  .amdhsa_user_sgpr_count 2
  .amdhsa_user_sgpr_kernarg_segment_ptr 1
  .amdhsa_system_sgpr_workgroup_id_x 1
.end_amdhsa_kernel
'''
only=sys.argv[2] if len(sys.argv)>2 else ''
o='\n'.join(hdr)+'\n'
ks=[]
if only!='k2': ks.append(('k1_kernel',gen_k1(sys.argv[3] if len(sys.argv)>3 else False),'grid=(256,1,1) block=(256,1,1) lds=163840',512,256))
if gen_k2 and only!='k1':
    from k2 import K2_LAUNCH,K2_VG,K2_ACC
    ks.append(('k2_kernel',gen_k2(),K2_LAUNCH,K2_VG,K2_ACC))
import os
if os.environ.get('K3'):
    from k2 import gen_k3
    ks.append(('k3_kernel',gen_k3(os.environ['K3']),'grid=(1,1,1) block=(64,1,1) lds=0',64,64))
for k in ks: o+=f'; @launch kernel={k[0]} {k[2]}\n'
o+='.amdgcn_target "amdgcn-amd-amdhsa--gfx950"\n.text\n'
for k in ks:
    o+=f'.globl {k[0]}\n.p2align 8\n.type {k[0]},@function\n'+k[1]
o+='.section .rodata,"a"\n'
for k in ks: o+='.p2align 6\n'+kd(k[0],k[3],k[4])
open(sys.argv[1],'w').write(o)
print('written',len(o))
```
